```python
import torch

def _softmax(x, axis=-1):
    return torch.softmax(x, dim=axis)
def _gelu(x):
    return torch.nn.functional.gelu(x, approximate="tanh")
def _silu(x):
    return torch.nn.functional.silu(x)
def _sigmoid(x):
    return torch.sigmoid(x)
def _layernorm(x, axis=-1, eps=1e-5):
    m = x.mean(dim=axis, keepdim=True)
    v = x.var(dim=axis, keepdim=True, unbiased=False)
    return (x - m) / torch.sqrt(v + eps)
def _scatter_add(tgt, idx, src, axis=0):
    return tgt.clone().index_add_(axis, idx, src)
def _segment_sum(src, seg, n):
    out = torch.zeros((n,) + src.shape[1:], dtype=src.dtype)
    return out.index_add_(0, seg, src)
def _pad(x, pw):
    flat = tuple(v for pair in reversed(pw) for v in pair)
    return torch.nn.functional.pad(x, flat)

kernel_name = 'recurrent_scan__sliding_local_dilated__glu_gated_bilinear__prompt'

def setup_inputs():

    _w = (lambda a: (lambda t: t.to(torch.bfloat16) if t.is_floating_point() else t)(torch.as_tensor(a)))
    def _A_setup():
        B, S, D = 1, 2048, 448
        return {
            "x": _w((lambda *s: torch.randn(*s, dtype=torch.bfloat16) * 0.05)(B, S, D)),
            "wqkv": _w((lambda *s: torch.randn(*s, dtype=torch.bfloat16) * 0.2)(D, 3 * D)),
            "wo": _w((lambda *s: torch.randn(*s, dtype=torch.bfloat16) * 0.2)(D, D)),
        }
    _A_in = _A_setup()

    def _B_setup():
        B, S, D, F = 1, 2048, 448, 1792
        return {
            "x": _w((lambda *s: torch.randn(*s, dtype=torch.bfloat16) * 0.05)(B, S, D)),
            "w_gate": _w((lambda *s: torch.randn(*s, dtype=torch.bfloat16) * 0.1)(D, F) * (D ** -0.5)),
            "w_up": _w((lambda *s: torch.randn(*s, dtype=torch.bfloat16) * 0.1)(D, F) * (D ** -0.5)),
            "w_down": _w((lambda *s: torch.randn(*s, dtype=torch.bfloat16) * 0.1)(F, D) * (F ** -0.5)),
        }
    _B_in = _B_setup()

    return {
        "A_x": _A_in["x"],
        "A_wqkv": _A_in["wqkv"],
        "A_wo": _A_in["wo"],
        "B_x": _B_in["x"],
        "B_w_gate": _B_in["w_gate"],
        "B_w_up": _B_in["w_up"],
        "B_w_down": _B_in["w_down"],
    }

def reference(A_x, A_wqkv, A_wo, B_x, B_w_gate, B_w_up, B_w_down):
    def _A_ref(x, wqkv, wo):
        B, S, D = x.shape
        H = 16; Dh = D // H
        W, dil = 8, 2
        qkv = (lambda x, *d: x.permute(*d))((x @ wqkv).reshape(B, S, 3, H, Dh), 2, 0, 3, 1, 4)
        q, k, v = qkv[0], qkv[1], qkv[2]
        scale = Dh ** -0.5
        pos = torch.arange(S)
        off = torch.arange(W) * dil
        idx = pos[:, None] - off[None, :]
        mask = idx >= 0
        idx_c = torch.where(mask, idx, 0).reshape(-1)
        kg = k[:, :, idx_c, :].reshape(B, H, S, W, Dh)
        vg = v[:, :, idx_c, :].reshape(B, H, S, W, Dh)
        logits = torch.einsum("bhsd,bhswd->bhsw", q, kg) * scale
        logits = torch.where(mask[None, None, :, :], logits, -1e9)
        attn = _softmax(logits, axis=-1)
        o = torch.einsum("bhsw,bhswd->bhsd", attn, vg)
        return (lambda x, *d: x.permute(*d))(o, 0, 2, 1, 3).reshape(B, S, D) @ wo

    def _B_ref(x, w_gate, w_up, w_down):
        g = torch.einsum("bsd,df->bsf", x, w_gate)
        u = torch.einsum("bsd,df->bsf", x, w_up)
        h = g * u
        return torch.einsum("bsf,fd->bsd", h, w_down)

    x = A_x
    xn = _layernorm(x, axis=-1)
    s = _A_ref(xn, A_wqkv, A_wo)
    g = _silu(_B_ref(xn, B_w_gate, B_w_up, B_w_down))
    return x + s * g
```

```python
import re

def R(p, a, n=1):
    return [(p, a + i) for i in range(n)]
def vr(a, n=1, p='v'):
    return f'{p}{a}' if n == 1 else f'{p}[{a}:{a+n-1}]'
def ar(a, n=1): return vr(a, n, 'a')
def sr(a, n=1): return vr(a, n, 's')

VALU_KINDS = ('valu', 'trans', 'pk', 'swap', 'dpp', 'rfl')
DS_KINDS = ('dsr', 'dsw')
VM_KINDS = ('vml', 'dma', 'vms')
SC_KINDS = ('salu', 'bar', 'wait', 'nop')

class Op:
    __slots__ = ('text', 'kind', 'rd', 'wr', 'early', 'dead', 'idx', 'preds', 'issue', 'maybe', 'srcc', 'glue', 'lat', 'done')
    def __init__(self, text, kind, rd=(), wr=(), early=-1e9, dead=None, maybe=False, srcc=(), lat=None):
        self.text, self.kind = text, kind
        self.rd, self.wr = list(rd), list(wr)
        self.early, self.dead = early, dead
        self.maybe = maybe
        self.srcc = list(srcc)
        self.glue = None
        self.lat = lat
        self.preds = []
        self.issue = None
        self.done = False

class Prog:
    def __init__(self, vm_lat=700, ds_lat=110):
        self.ops = []
        self.vm_lat, self.ds_lat = vm_lat, ds_lat
        self.nm = 0
    def add(self, text, kind, rd=(), wr=(), pre=(), post=(), **kw):
        o = Op(text, kind, rd, wr, **kw)
        if pre or post:
            o.glue = (list(pre), list(post))
        o.idx = len(self.ops)
        if kind == 'mfma':
            self.nm += 1
        self.ops.append(o)
        return o
    def latency(self, p, c, raw):
        if not raw:
            if p.kind in DS_KINDS or p.kind in VM_KINDS:
                return 4
            if p.kind == 'mfma':
                return 16
            return 4
        if p.lat is not None: return p.lat
        if p.kind in VM_KINDS: return self.vm_lat
        if p.kind in DS_KINDS: return self.ds_lat
        if p.kind == 'mfma':
            if c.kind == 'mfma' and set(c.srcc) == set(p.wr) and not (set(p.wr) & (set(c.rd) - set(c.srcc))):
                return 0
            return 44
        if p.kind in VALU_KINDS:
            if c.kind in ('mfma', 'swap', 'dpp'): return 12
            if p.kind == 'trans': return 12
            return 4
        return 4
    def build(self):
        lastw, readers = {}, {}
        for o in self.ops:
            pr = {}
            for r in o.rd:
                if r in lastw:
                    p = lastw[r]; pr[p.idx] = max(pr.get(p.idx, 0), self.latency(p, o, True))
            for r in o.wr:
                if r in lastw:
                    p = lastw[r]
                    isreg = r[0] in 'vas' and isinstance(r[1], int)
                    pr[p.idx] = max(pr.get(p.idx, 0), self.latency(p, o, isreg and (p.kind in VM_KINDS + DS_KINDS + ('mfma',)) and not (o.kind == 'mfma' and p.kind == 'mfma')))
                for p in readers.get(r, ()):
                    if p is not o:
                        pr[p.idx] = max(pr.get(p.idx, 0), self.latency(p, o, False))
            o.preds = list(pr.items())
            for r in o.rd:
                readers.setdefault(r, []).append(o)
            for r in o.wr:
                lastw[r] = o; readers[r] = []
    def schedule(self, verbose=False):
        self.build()
        ops = self.ops
        mf = [o for o in ops if o.kind == 'mfma']
        mpos = {o.idx: i for i, o in enumerate(mf)}
        INF = len(mf) + 1000
        dl = [INF + o.idx * 1e-6 for o in ops]
        for o in reversed(ops):
            if o.kind == 'mfma': dl[o.idx] = mpos[o.idx]
            if o.dead is not None: dl[o.idx] = min(dl[o.idx], o.dead)
            for (p, lat) in o.preds:
                dl[p] = min(dl[p], dl[o.idx] - lat / 16.0 - 0.01)
        fill = [o for o in ops if o.kind != 'mfma']
        fill.sort(key=lambda o: (dl[o.idx], o.idx))
        out = []
        t = 0
        def ready_time(o):
            rt = 0
            for (p, lat) in o.preds:
                q = ops[p]
                if q.issue is None: return None
                rt = max(rt, q.issue + lat)
            return rt
        def cost(o):
            c = 8 if o.kind in ('trans', 'swap') else 4
            if o.glue: c += 4 * (len(o.glue[0]) + len(o.glue[1]))
            return c
        seqno = {}
        waited = {'vm': -1, 'lg': -1}
        def q_of(o):
            return 'vm' if o.kind in VM_KINDS else ('lg' if o.kind in DS_KINDS else None)
        def needs_wait(o):
            for (p, lat) in o.preds:
                q = q_of(ops[p])
                if q and lat > 4 and p in seqno and seqno[p] > waited[q]: return True
            return False
        def mark_wait(o):
            for (p, lat) in o.preds:
                q = q_of(ops[p])
                if q and lat > 4 and p in seqno: waited[q] = max(waited[q], seqno[p])
        def emit(o, t):
            mark_wait(o)
            o.issue = t; o.done = True
            if q_of(o): seqno[o.idx] = len(out)
            out.append(o)
        def force(o):
            nonlocal t
            for (p, lat) in sorted(o.preds):
                if ops[p].issue is None:
                    assert ops[p].kind != 'mfma', f'mfma order violated: {o.text} needs {ops[p].text}'
                    force(ops[p])
            rt = ready_time(o)
            o.done = True
            while rt > t:
                q = pick(cur_i[0], t, VALU_KINDS + DS_KINDS + VM_KINDS + ('salu',), 64)
                if q is None: break
                emit(q, t); t += cost(q)
            t = max(t, rt)
            emit(o, t); t += cost(o)
        cur_i = [-1]
        def pick(cur, tnow, allow, budget, maxdl=1e18):
            for o in fill:
                if o.done: continue
                if dl[o.idx] > maxdl: return None
                if o.early > cur: continue
                if o.kind not in allow: continue
                c = cost(o)
                if c > budget: continue
                rt = ready_time(o)
                if rt is None or rt > tnow: continue
                return o
            return None
        stall = 0
        for i, m in enumerate(mf):
            cur_i[0] = i - 1
            for (p, lat) in sorted(m.preds):
                if ops[p].issue is None: force(ops[p])
            rt = ready_time(m)
            while rt > t:
                o = pick(i - 1, t, VALU_KINDS + DS_KINDS + VM_KINDS + SC_KINDS, 64)
                if o is None: break
                emit(o, t); t += cost(o)
            if rt > t: stall += rt - t; t = rt
            emit(m, t)
            t0 = t
            fill = [o for o in fill if not o.done]
            VEC2 = DS_KINDS + VM_KINDS + ('valu', 'trans', 'swap', 'dpp', 'rfl')
            nxt = mf[i + 1] if i + 1 < len(mf) else None
            wait_needed = nxt is not None and needs_wait(nxt)
            used = 0
            s1 = pick(i, t0 + 4, ('salu', 'bar'), 4)
            if s1 is not None and (s1.kind == 'bar' or not wait_needed):
                if needs_wait(s1): used += 4; mark_wait(s1)
                emit(s1, t0 + 4); slot1 = True
            else:
                slot1 = False
            if wait_needed and slot1: used += 4
            if used < 8:
                o = pick(i, t0 + 8, VEC2 + ('salu',), 16 if used == 0 else 4)
                if o is not None and slot1 and not wait_needed and needs_wait(o):
                    used += 4; wait_needed = True
                if o is not None:
                    if needs_wait(o): wait_needed = True
                    mark_wait(o)
                    c = cost(o)
                    if o.glue and not slot1 and not wait_needed: c -= 4
                    emit(o, t0 + 8); used += c
                    if used <= 4:
                        o2 = pick(i, t0 + 12, ('valu', 'dpp', 'rfl', 'salu'), 4)
                        if o2 is not None and not (slot1 and not wait_needed and needs_wait(o2)):
                            mark_wait(o2)
                            emit(o2, t0 + 12); used += 4
            t = t0 + max(16, 8 + used)
            tt = t0 + 8 + used
            while True:
                o = pick(i, tt, VALU_KINDS + DS_KINDS + VM_KINDS + SC_KINDS, 64, maxdl=i + 0.5)
                if o is None: break
                emit(o, tt); tt += cost(o)
            t = max(t, tt)
        fill = [o for o in fill if not o.done]
        while fill:
            o = pick(1e9, t, VALU_KINDS + DS_KINDS + VM_KINDS + SC_KINDS, 64)
            if o is None:
                cand = [(ready_time(o), k) for k, o in enumerate(fill) if ready_time(o) is not None]
                tt, k = min(cand); stall += tt - t; t = tt; continue
            emit(o, t); t += cost(o)
            fill = [o for o in fill if not o.done]
        self.est = (t, stall, len(mf))
        return out

def expand(seq):
    res = []
    for o in seq:
        if o.glue:
            res += o.glue[0]; res.append(o); res += o.glue[1]
        else:
            res.append(o)
    return res

def insert_waits(seq, vm0=(), lg0=()):
    out = []
    vmq, lgq = [], []
    pend = {}
    pos = {}
    for o in seq:
        needv, needl = None, None
        for r in list(o.rd) + [w for w in o.wr if w[0] in 'vas' and isinstance(w[1], int)]:
            p = pend.get(r)
            if p is None: continue
            if p in vmq:
                k = vmq.index(p); needv = k if needv is None else max(needv, k)
            elif p in lgq:
                if o.kind in DS_KINDS and not (r[0] in 'vas' and isinstance(r[1], int)): continue
                k = lgq.index(p); needl = k if needl is None else max(needl, k)
        if needv is not None or needl is not None:
            ins = len(out)
            j = len(out) - 1
            lim = max(pos[id(vmq[needv])] if needv is not None else -1, pos[id(lgq[needl])] if needl is not None else -1)
            steps = 0
            while j > lim and steps < 4:
                if out[j].kind == 'mfma':
                    ins = j + 1; break
                if out[j].kind == 'bar': break
                j -= 1; steps += 1
            def cnt(q, k):
                return sum(1 for x in q[k + 1:] if pos[id(x)] < ins and not x.maybe)
            v = min(63, cnt(vmq, needv)) if needv is not None else None
            l = min(15, cnt(lgq, needl)) if needl is not None else None
            if ins < len(out) and out[ins].kind == 'wait':
                w = out[ins]
                pv, pl = w.rd
                v = pv if v is None else (v if pv is None else min(v, pv))
                l = pl if l is None else (l if pl is None else min(l, pl))
                w.rd = (v, l)
            else:
                w = Op('', 'wait'); w.rd = (v, l)
                out.insert(ins, w)
                for x in out[ins + 1:]:
                    if id(x) in pos: pos[id(x)] += 1
            if needv is not None: vmq = vmq[needv + 1:]
            if needl is not None: lgq = lgq[needl + 1:]
        pos[id(o)] = len(out)
        out.append(o)
        if o.kind in VM_KINDS:
            vmq.append(o)
            for w in o.wr: pend[w] = o
        elif o.kind in DS_KINDS:
            lgq.append(o)
            for w in o.wr: pend[w] = o
        else:
            for w in o.wr: pend.pop(w, None)
    for w in out:
        if w.kind == 'wait' and not w.text:
            v, l = w.rd
            w.text = 's_waitcnt' + (f' vmcnt({v})' if v is not None else '') + (f' lgkmcnt({l})' if l is not None else '')
            w.rd = []
    return out

def insert_nops(seq):
    out = []
    hist = []
    st = 0
    nn = 0
    for o in seq:
        need = 0
        rd, wr = set(o.rd), set(o.wr)
        for (p, ps) in reversed(hist):
            d = st - ps - 1
            if d >= 12: break
            pw, prd = set(p.wr), set(p.rd)
            req = 0
            if p.kind == 'mfma':
                if o.kind == 'mfma':
                    ab = rd - set(o.srcc)
                    if pw & ab: req = 8
                    elif pw & set(o.srcc): req = 0 if set(o.srcc) == pw else 6
                    elif pw & wr: req = 0 if wr == pw else 6
                elif o.kind in VALU_KINDS + DS_KINDS + VM_KINDS:
                    if pw & (rd | wr): req = 8
                    elif set(p.srcc) & wr: req = 3
            elif p.kind in VALU_KINDS:
                vw = {r for r in pw if r[0] in 'va'}
                sw = {r for r in pw if r[0] == 's' or r == ('vcc', 0)}
                if o.kind == 'mfma' and vw & rd: req = 2
                if o.kind in ('swap', 'dpp') and vw & rd: req = 2
                if o.kind == 'rfl' and vw & rd: req = max(req, 1)
                if p.kind == 'trans' and o.kind in VALU_KINDS and o.kind != 'trans' and vw & rd: req = max(req, 1)
                if sw & rd:
                    if o.kind in VALU_KINDS: req = max(req, 2)
                    if o.kind in VM_KINDS: req = max(req, 5)
                    if o.kind == 'salu': req = max(req, 1)
            elif p.kind in ('vms', 'dsw'):
                if {r for r in prd if r[0] in 'va'} & wr: req = 2
            elif p.kind == 'salu':
                if ('m0', 0) in pw and o.kind == 'dma': req = 1
            need = max(need, req - d)
        if need > 0:
            n = Op(f's_nop {need-1}', 'nop'); out.append(n); st += need; nn += need
        out.append(o)
        hist.append((o, st)); st += 1
        if len(hist) > 40: hist = hist[-20:]
    return out, nn

def finalize(prog, name=''):
    seq = expand(prog.schedule())
    seq = insert_waits(seq)
    seq, nn = insert_nops(seq)
    from collections import Counter
    c = Counter(o.kind for o in seq)
    print(f'[{name}] est cycles {prog.est[0]} stall {prog.est[1]} mfma {prog.est[2]} nop-states {nn} mix {dict(c)}')
    return '\n'.join('  ' + o.text for o in seq) + '\n'


_reg = re.compile(r'\b([vas])(\d+)\b|\b([vas])\[(\d+):(\d+)\]|\b(vcc|exec|m0)\b')
def regs_of(tok):
    res = []
    for m in _reg.finditer(tok):
        if m.group(1): res.append((m.group(1), int(m.group(2))))
        elif m.group(3): res += R(m.group(3), int(m.group(4)), int(m.group(5)) - int(m.group(4)) + 1)
        else: res.append((m.group(6), 0))
    return res
def split_ops(text):
    name, _, rest = text.strip().partition(' ')
    toks, depth, cur = [], 0, ''
    for ch in rest:
        if ch == '[': depth += 1
        if ch == ']': depth -= 1
        if ch == ',' and depth == 0:
            toks.append(cur.strip()); cur = ''
        else: cur += ch
    toks.append(cur.strip())
    last = toks[-1].split(' ')
    toks[-1] = last[0]
    return name, toks
TRANS = ('v_exp_f32', 'v_rcp_f32', 'v_rsq_f32', 'v_sqrt_f32', 'v_log_f32')
NOSCC = ('s_mov_b32', 's_mov_b64', 's_mul_i32', 's_cselect_b32', 's_cselect_b64', 's_movk_i32')
def auto(text):
    name, t = split_ops(text)
    if name.startswith('v_mfma'):
        c = regs_of(t[3])
        return 'mfma', regs_of(t[1]) + regs_of(t[2]) + c, regs_of(t[0]), c
    if name.startswith('ds_read') or name == 'ds_bpermute_b32':
        return 'dsr', [r for x in t[1:] for r in regs_of(x)], regs_of(t[0]), ()
    if name.startswith('ds_write'):
        return 'dsw', [r for x in t for r in regs_of(x)], [], ()
    if name.startswith('buffer_load'):
        if text.rstrip().endswith('lds'):
            return 'dma', [r for x in t for r in regs_of(x)] + [('m0', 0)], [], ()
        return 'vml', [r for x in t[1:] for r in regs_of(x)], regs_of(t[0]), ()
    if name.startswith('buffer_store'):
        return 'vms', [r for x in t for r in regs_of(x)], [], ()
    if name.startswith('s_'):
        if name.startswith('s_cmp'):
            return 'salu', [r for x in t for r in regs_of(x)], [], ()
        rd = [r for x in t[1:] for r in regs_of(x)]
        wr = regs_of(t[0])
        return 'salu', rd, wr, ()
    rd = [r for x in t[1:] for r in regs_of(x)]
    wr = regs_of(t[0])
    if name.startswith('v_permlane'):
        return 'swap', wr + rd, wr + rd, ()
    if name.startswith('v_fmac') or name.startswith('v_dot2c'): rd += wr
    if name.endswith('_dpp'): return 'dpp', rd + wr, wr, ()
    if name == 'v_readfirstlane_b32': return 'rfl', rd, wr, ()
    if name.startswith('v_pk_') or name.startswith('v_dot'): return 'pk', rd, wr, ()
    if name in TRANS: return 'trans', rd, wr, ()
    return 'valu', rd, wr, ()
def mk(text, rd=(), wr=(), **kw):
    k, r, w, c = auto(text)
    return Op(text, k, r + list(rd), w + list(wr), srcc=c, **kw)
def I(p, text, rd=(), wr=(), **kw):
    o = None
    for line in text.split('\n'):
        line = line.strip()
        if not line: continue
        assert not line.startswith('s_cmp') and not line.startswith('s_cselect')
        k, r, w, c = auto(line)
        o = p.add(line, k, r + list(rd), w + list(wr), srcc=c, **kw)
    return o

def G(p, text, **kw):
    lines = [l.strip() for l in text.split('\n') if l.strip()]
    rd, wr = [], []
    for l in lines:
        k, r, w, c = auto(l)
        assert k == 'salu'
        rd += r; wr += w
    return p.add('\n  '.join(lines), 'salu', rd, wr, **kw)
```

```python
import sys, struct
sys.path.insert(0, 'gen')
from sched import *

NAME = 'recurrent_scan__sliding_local_dilated__glu_gated_bilinear__prompt'
AH_BYTES = 288 * 32768
def f32(x): return '0x%08x' % struct.unpack('<I', struct.pack('<f', x))[0]

CFG = dict(KT=10, pace_ffn=5.5, pace_att=4.4, burst=10, stamp=False, st_flags='sc1', ld_flags='')

def mf(p, d, a, b, c, **kw):
    return I(p, f'v_mfma_f32_16x16x32_bf16 {d}, {a}, {b}, {c}', **kw)

class K1:
    def __init__(self, att, cfg):
        self.att = att; self.cfg = cfg
        self.p = Prog()
        if att:
            self.NT, self.NS, self.NW, self.NST, self.pitch = 7, 7, 12, 2, 2688
            self.WIN = 4
        else:
            self.NT, self.NS, self.NW, self.NST, self.pitch = 11, 5, 11, 3, 3584
            self.WIN = 6
        self.TS = self.NS * 2048
        self.X0 = 0 if att else 4608
        self.WR = self.X0 + self.NT * self.TS
        self.MISC = self.WR + 4 * self.NW * 1024 if att else 0
        assert self.WR + 4 * self.NW * 1024 <= 163840
        self.ONES = self.NT * 16 - 1
        self.NU = (self.NT + 1) // 2
        if att:
            self.TAB = self.MISC + 64; self.TAB2 = self.MISC + 1024 + 64
            self.SCR = self.MISC + 2048 + 64; self.SCRS = 1024
            assert self.MISC + 12 * 1024 <= 163840
        else:
            self.TAB = self.MISC; self.SCR = self.MISC + 1536; self.SCRS = 768
            assert self.SCR + 4 * 768 <= self.X0
        self.dmaq = []
        self.have = set()
        self.ndma = 0
        self.xring = 0
        self.wunit = 0
    V_OFFX, V_OFFW, V_XB, V_TR, V_SA = 10, 11, 13, 17, 19
    V_ST, V_STL, V_SCW, V_SCS, V_SCR, V_TABW, V_TABR = 25, 26, 27, 28, 29, 30, 31
    XF0 = 224
    def setup(self):
        p, att = self.p, self.att
        TS = self.TS
        I(p, 'v_and_b32 v1, 63, v0\nv_lshrrev_b32 v2, 6, v0\nv_readfirstlane_b32 s30, v2')
        I(p, 's_and_b32 s31, s30, 1\ns_lshr_b32 s32, s30, 1')
        I(p, f'''v_lshrrev_b32 v3, 4, v1
                 s_lshl_b32 s47, s31, 2
                 v_or_b32 v4, s47, v3
                 v_and_b32 v5, 7, v1
                 v_xor_b32 v4, v4, v5
                 v_lshrrev_b32 v5, 3, v1
                 v_mul_u32_u24 v5, 896, v5
                 v_lshl_add_u32 v{self.V_OFFX}, v4, 4, v5''')
        I(p, f'''s_lshl_b32 s47, s32, 4
                 s_add_u32 s47, s47, s33
                 s_lshl_b32 s52, s31, 3
                 s_add_u32 s47, s47, s52
                 s_mul_i32 s47, s47, 896''')
        for n in range(self.NU):
            if n == 0 and att:
                I(p, 's_max_i32 s34, s47, 0')
            else:
                I(p, f's_add_u32 s{34+n}, s47, {n*32*896}')
        I(p, f's_mul_i32 s40, s32, {TS}\ns_lshl_b32 s52, s31, 10\ns_add_u32 s40, s40, s52')
        I(p, f's_mul_i32 s41, s30, {self.NW*1024}\ns_add_u32 s41, s41, {self.WR}')
        G(p, '''s_cmp_eq_u32 s30, 1
                s_cselect_b32 s45, 0x00ffffff, -1
                s_cmp_ge_u32 s30, 2
                s_cselect_b32 s45, 0, s45
                s_cselect_b32 s44, 0, -1''')
        I(p, f'''v_bfe_u32 v4, v1, 2, 2
                 v_lshl_add_u32 v4, v3, 3, v4
                 v_mul_u32_u24 v4, {self.pitch}, v4
                 v_and_b32 v5, 1, v3
                 v_lshlrev_b32 v5, 1, v5
                 v_and_b32 v6, 3, v1
                 v_xor_b32 v6, v6, v5
                 v_lshl_add_u32 v4, v6, 4, v4
                 s_mul_i32 s52, s30, {56 if att else 64}
                 s_add_u32 s52, s52, s43
                 v_add_u32 v{self.V_OFFW}, s52, v4
                 v_add_u32 v{self.V_OFFW+1}, {4*self.pitch}, v{self.V_OFFW}''')
        p.add('s_waitcnt lgkmcnt(0)', 'salu', [], R('s', 4, 8) + R('s', 28, 2))
        I(p, 's_mov_b32 s12, s4\ns_mov_b32 s13, s5\ns_mov_b32 s14, 1835008\ns_mov_b32 s15, 0x20000')
        if att:
            I(p, 's_mov_b32 s16, s6\ns_mov_b32 s17, s7\ns_mov_b32 s18, 1204224\ns_mov_b32 s19, 0x20000')
        else:
            I(p, 's_mov_b32 s16, s8\ns_mov_b32 s17, s9\ns_mov_b32 s18, 1605632\ns_mov_b32 s19, 0x20000')
            I(p, 's_mov_b32 s20, s10\ns_mov_b32 s21, s11\ns_mov_b32 s22, 1605632\ns_mov_b32 s23, 0x20000')
        I(p, f's_mov_b32 s24, s28\ns_mov_b32 s25, s29\ns_mov_b32 s26, {AH_BYTES}\ns_mov_b32 s27, 0x20000')
    def setup2(self):
        p, att, TS = self.p, self.att, self.TS
        I(p, 'v_and_b32 v2, 15, v1')
        I(p, f'''v_lshrrev_b32 v4, 3, v1
                 v_min_u32 v4, {self.NS-1}, v4
                 v_lshlrev_b32 v4, 11, v4
                 v_and_b32 v5, 7, v1
                 v_lshl_add_u32 v4, v5, 4, v4
                 v_add_u32 v4, {self.X0 + (self.NT-1)*TS + 15*128}, v4
                 v_mov_b32 v6, 0x3f803f80
                 v_mov_b32 v7, 0x3f803f80
                 v_mov_b32 v8, 0x3f803f80
                 v_mov_b32 v9, 0x3f803f80''')
        I(p, 'ds_write_b128 v4, v[6:9]', wr=[('tok_ones', 0)])
        if att:
            I(p, f'''v_min_u32 v5, 11, v1
                     v_lshlrev_b32 v5, 10, v5
                     v_add_u32 v5, {self.MISC}, v5
                     v_mov_b32 v32, 0
                     v_mov_b32 v33, 0''')
            I(p, 'ds_write_b64 v5, v[32:33]', wr=[('tok_zero', 0)])
        I(p, f'''v_lshrrev_b32 v4, 1, v2
                 v_xor_b32 v4, v4, v3
                 v_lshlrev_b32 v5, 7, v2
                 v_add_u32 v5, {self.X0}, v5
                 v_lshl_add_u32 v{self.V_XB}, v4, 4, v5
                 v_xor_b32 v{self.V_XB+1}, 64, v{self.V_XB}
                 v_add_u32 v{self.V_XB+2}, {self.WIN*TS}, v{self.V_XB}
                 v_add_u32 v{self.V_XB+3}, {self.WIN*TS}, v{self.V_XB+1}''')
        I(p, f'''v_lshrrev_b32 v4, 2, v1
                 v_lshlrev_b32 v4, 6, v4
                 v_and_b32 v5, 1, v3
                 v_lshl_add_u32 v4, v5, 5, v4
                 v_and_b32 v5, 3, v1
                 v_lshl_add_u32 v4, v5, 3, v4
                 v_add_u32 v{self.V_TR}, s41, v4
                 v_xor_b32 v{self.V_TR+1}, 32, v{self.V_TR}''')
        if att:
            I(p, f'''v_cmp_eq_u32 vcc, 3, v5
                     v_mov_b32 v4, {self.MISC}
                     v_cndmask_b32 v{self.V_TR+1}, v{self.V_TR+1}, v4, vcc''')
        I(p, f's_mul_i32 s52, s30, {15*self.NST}\nv_cmp_eq_u32 s[48:49], 15, v2')
        for n in range(self.NST):
            a = self.V_SA + 2 * n
            I(p, f'''v_add_u32 v4, s52, v2
                     v_add_u32 v4, {15*n}, v4
                     v_min_u32 v4, {self.ONES-1}, v4
                     v_mov_b32 v5, {self.ONES}
                     v_cndmask_b32 v4, v4, v5, s[48:49]
                     v_lshrrev_b32 v5, 4, v4
                     v_mul_u32_u24 v5, {TS}, v5
                     v_and_b32 v4, 15, v4
                     v_lshl_add_u32 v5, v4, 7, v5
                     v_add_u32 v5, {self.X0}, v5
                     v_lshrrev_b32 v4, 1, v4
                     v_xor_b32 v4, v4, v3
                     v_lshl_add_u32 v{a}, v4, 4, v5
                     v_xor_b32 v{a+1}, 64, v{a}''')
        I(p, f'''v_lshlrev_b32 v4, 15, v3
                 v_lshl_add_u32 v{self.V_ST}, v2, 4, v4
                 v_mov_b32 v4, 0x40000000
                 v_cndmask_b32 v{self.V_STL}, v{self.V_ST}, v4, s[48:49]''')
        I(p, f'''s_mul_i32 s53, s30, {self.SCRS}
                 s_add_u32 s53, s53, {self.SCR}
                 v_lshl_add_u32 v4, v2, 3, s53
                 v_mov_b32 v5, 384
                 v_add_u32 v5, s53, v5
                 v_lshrrev_b32 v6, 2, v2
                 v_cmp_eq_u32 vcc, v6, v3
                 v_cndmask_b32 v{self.V_SCW}, v5, v4, vcc
                 v_cmp_eq_u32 vcc, 3, v3
                 v_cndmask_b32 v{self.V_SCS}, v5, v4, vcc
                 v_lshl_add_u32 v{self.V_SCR}, v1, 3, s53''')
        sh = 2 if att else 3
        dummy = 126 if att else 190
        I(p, f'''v_mul_u32_u24 v4, 15, v3
                 v_add3_u32 v4, v4, v2, s52
                 v_mov_b32 v5, {dummy}
                 v_cndmask_b32 v4, v4, v5, s[48:49]
                 v_cmp_le_u32 vcc, {self.NST}, v3
                 v_cndmask_b32 v4, v4, v5, vcc
                 v_lshlrev_b32 v4, {sh}, v4
                 v_add_u32 v{self.V_TABW}, {self.TAB}, v4
                 v_lshlrev_b32 v4, {sh}, v2
                 v_add_u32 v{self.V_TABR}, {self.TAB}, v4''')
        I(p, 's_mov_b32 s48, 0xaaaaaaaa\ns_mov_b32 s49, 0xaaaaaaaa\ns_mov_b32 s50, 0xcccccccc\ns_mov_b32 s51, 0xcccccccc')
    def q_x(self, j):
        for n in range(self.NU):
            self.dmaq.append(('x', j, n))
    def q_w(self, ks, m, e):
        self.dmaq.append(('w', ks, m, e, self.wunit)); self.wunit += 1
    def pump(self):
        p, cfg = self.p, self.cfg
        pace = cfg['pace_att'] if self.att else cfg['pace_ffn']
        fl = cfg['ld_flags']
        while self.dmaq:
            d = self.dmaq[0]
            early = (self.ndma - cfg['burst']) * pace
            if d[0] == 'x':
                _, j, n = d
                rd = []
                if j >= self.NS:
                    tok = ('tok_xfree', j - self.NS)
                    if tok not in self.have: return
                    rd = [tok]
                slot = j % self.NS
                I(p, f's_add_u32 m0, s40, {self.X0 + 2*n*self.TS + slot*2048 - 128*j}')
                kw = {}
                if n == self.NU - 1:
                    kw = dict(pre=[mk('s_mov_b64 exec, s[44:45]')], post=[mk('s_mov_b64 exec, -1')], maybe=True)
                    rd = rd + R('s', 44, 2)
                I(p, f'buffer_load_dwordx4 v{self.V_OFFX}, s[12:15], s{34+n} offen offset:{128*j} {fl} lds', rd=rd, wr=[('tok_xd', j, n)], early=early, **kw)
            else:
                _, ks, m, e, u = d
                rd = []
                if u >= self.NW:
                    tok = ('tok_wrd', u - self.NW)
                    if tok not in self.have: return
                    rd = [tok]
                sreg = 42
                if ('soff', ks, m >= 2) not in self.have:
                    self.have.add(('soff', ks, m >= 2))
                    I(p, f's_mov_b32 s{sreg}, {ks*32*self.pitch}')
                off = 896 * m if self.att else 0
                srd = 's[16:19]' if (self.att or m == 0) else 's[20:23]'
                I(p, f's_add_u32 m0, s41, {(u % self.NW)*1024 - off}')
                I(p, f'buffer_load_dwordx4 v{self.V_OFFW+e}, {srd}, s{sreg} offen offset:{off} {fl} lds', rd=rd, wr=[('tok_wd', u)], early=early)
                self.wmap[(ks, m, e)] = u
            self.dmaq.pop(0); self.ndma += 1
    wmap = None
    def barrier_x(self, j, extra_rd=(), extra_wr=()):
        rd = [('tok_xd', j, n) for n in range(self.NU)] + list(extra_rd)
        wr = [('tok_xr', j), ('tok_bar', 0)] + list(extra_wr)
        if j >= 2 and j - 2 + self.NS <= 6:
            rd.append(('tok_xrd', j - 2)); wr.append(('tok_xfree', j - 2)); self.have.add(('tok_xfree', j - 2))
        self.p.add('s_barrier', 'bar', rd, wr, early=self.p.nm - 14)
    def wfrag(self, ks, m, base, look=12):
        for e in range(2):
            u = self.wmap[(ks, m, e)]
            for s in range(2):
                rd = [('tok_wd', u)] + ([('tok_xr', 0)] if (self.att and s == 1) else [])
                I(self.p, f'ds_read_b64_tr_b16 {ar(base+4*s+2*e,2)}, v{self.V_TR+s} offset:{(u % self.NW)*1024}',
                  rd=rd, wr=[('tok_wrd', u)], early=self.p.nm - look)
            self.have.add(('tok_wrd', u))
    def xfrag(self, t, ks, stat=None):
        j, e = ks >> 1, ks & 1
        r = self.XF0 + 4 * (self.xring % 8); self.xring += 1
        slot = j % self.NS
        if stat is None:
            w = t // self.WIN
            a, off = self.V_XB + 2 * w + e, (t - w * self.WIN) * self.TS + slot * 2048
        else:
            a, off = self.V_SA + 2 * stat + e, slot * 2048
        I(self.p, f'ds_read_b128 {ar(r,4)}, v{a} offset:{off}', rd=[('tok_xr', j)], wr=[('tok_xrd', j)])
        return ar(r, 4)
    def stat_mfma(self, ks, SACC):
        for n in range(self.NST):
            f = self.xfrag(0, ks, stat=n)
            d = vr(SACC + 4 * n, 4)
            mf(self.p, d, f, f, d if ks else '0')
    def stat_final(self, SACC, T):
        p = self.p
        for n in range(self.NST):
            d = SACC + 4 * n
            I(p, f'ds_write_b32 v{self.V_SCS}, v{d+3} offset:{128*n}', wr=[('tok_scr', 0)])
            I(p, f'''v_cndmask_b32 v{d}, v{d}, v{d+1}, s[48:49]
                     v_cndmask_b32 v{d+2}, v{d+2}, v{d+3}, s[48:49]
                     v_cndmask_b32 v{d}, v{d}, v{d+2}, s[50:51]''')
            I(p, f'ds_write_b32 v{self.V_SCW}, v{d} offset:{128*n+4}', wr=[('tok_scr', 0)])
        o = I(p, f'ds_read_b64 {vr(T,2)}, v{self.V_SCR}', rd=[('tok_scr', 0)])
        I(p, f'''v_mul_f32 v{T}, {f32(1/448)}, v{T}
                 v_mul_f32 v{T+2}, v{T}, v{T}
                 v_mul_f32 v{T+1}, {f32(1/448)}, v{T+1}
                 v_sub_f32 v{T+1}, v{T+1}, v{T+2}
                 v_max_f32 v{T+1}, 0, v{T+1}
                 v_cvt_pk_bf16_f32 v{T+2}, -v{T}, v{T+1}
                 v_lshlrev_b32 v{T}, 16, v{T+2}
                 v_and_b32 v{T+1}, 0xffff0000, v{T+2}
                 v_add_f32 v{T+1}, {f32(1e-5)}, v{T+1}
                 v_cvt_pk_bf16_f32 v{T+1}, v{T+1}, v{T+1}
                 v_and_b32 v{T+1}, 0xffff0000, v{T+1}
                 v_sqrt_f32 v{T+1}, v{T+1}
                 v_cvt_pk_bf16_f32 v{T+1}, v{T+1}, v{T+1}
                 v_and_b32 v{T+1}, 0xffff0000, v{T+1}
                 v_rcp_f32 v{T+1}, v{T+1}''')
        if self.att:
            I(p, f'ds_write_b32 v{self.V_TABW}, v{T}', wr=[('tok_tw', 0)])
            I(p, f'ds_write_b32 v{self.V_TABW}, v{T+1} offset:1024', wr=[('tok_tw', 1)])
            p.add('s_barrier', 'bar', [('tok_tw', 0), ('tok_tw', 1)], [('tok_tab', 0), ('tok_bar', 0)])
        else:
            I(p, f'v_mul_f32 v{T+1}, v{T+1}, v{T+1}')
            I(p, f'ds_write_b64 v{self.V_TABW}, {vr(T,2)}', wr=[('tok_tw', 0)])
            p.add('s_barrier', 'bar', [('tok_tw', 0)], [('tok_tab', 0), ('tok_bar', 0)])

def gen_ffn(cfg):
    k = K1(False, cfg); p = k.p; k.wmap = {}
    ACC, SACC, CS, T, ST = 64, 32, 44, 60, 240
    KT = cfg['KT']
    k.setup()
    for j in range(7):
        k.q_x(j)
        for ks in (2 * j, 2 * j + 1):
            for e in range(2):
                for m in range(2): k.q_w(ks, m, e)
    k.pump()
    k.setup2()
    I(p, 's_lshl_b32 s52, s30, 17\ns_add_u32 s46, s46, s52')
    def acc(t, s): return vr(ACC + 16 * t + 4 * s, 4)
    def tile_mfma(t, ks):
        f = k.xfrag(t, ks)
        for s in range(4):
            mf(p, acc(t, s), ar(16 * ks + 4 * s, 4), f, acc(t, s) if ks else '0')
    for ks in range(KT):
        if ks % 2 == 0:
            k.barrier_x(ks // 2, extra_rd=[('tok_ones', 0)] if ks == 0 else [])
        k.pump()
        for m in range(2): k.wfrag(ks, m, 16 * ks + 8 * m)
        k.pump()
        for t in range(11): tile_mfma(t, ks)
        k.stat_mfma(ks, SACC)
    for ks in range(KT, 14):
        if ks % 2 == 0: k.barrier_x(ks // 2)
        k.pump()
        for m in range(2): k.wfrag(ks, m, 16 * ks + 8 * m, look=12 + 8 * (14 - ks))
        k.pump()
    assert not k.dmaq
    for ks in range(KT, 14): k.stat_mfma(ks, SACC)
    k.stat_final(SACC, 244)
    order = [10] + list(range(10))
    def epi(t, n, pk):
        a = ACC + 16 * t
        st = ST + 2 * (n % 2)
        I(p, f'ds_read_b64 {vr(st,2)}, v{k.V_TABR} offset:{128*t}', rd=[('tok_tab', 0)])
        if pk:
            for i in range(0, 16, 2):
                I(p, f'v_pk_fma_f32 {vr(a+i,2)}, {vr(CS+i,2)}, {vr(st,2)}, {vr(a+i,2)} op_sel_hi:[1,0,1]')
            for i in range(0, 8, 2):
                I(p, f'v_pk_mul_f32 {vr(a+i,2)}, {vr(a+i,2)}, {vr(a+8+i,2)}')
            for i in range(0, 8, 2):
                I(p, f'v_pk_mul_f32 {vr(a+i,2)}, {vr(a+i,2)}, {vr(st,2)} op_sel:[0,1]')
        else:
            for i in range(16): I(p, f'v_fmac_f32 v{a+i}, v{CS+i}, v{st}')
            for i in range(8): I(p, f'v_mul_f32 v{a+i}, v{a+i}, v{a+8+i}')
            for i in range(8): I(p, f'v_mul_f32 v{a+i}, v{a+i}, v{st+1}')
        for i in range(4): I(p, f'v_cvt_pk_bf16_f32 v{a+8+i}, v{a+2*i}, v{a+2*i+1}')
        vo = k.V_STL if t == 10 else k.V_ST
        I(p, f'buffer_store_dwordx4 {vr(a+8,4)}, v{vo}, s[24:27], s46 offen offset:{256*t} {cfg["st_flags"]}')
    for n, t in enumerate(order):
        for ks in range(KT, 14): tile_mfma(t, ks)
        if t == 10:
            for i in range(16):
                I(p, f'v_mov_b32_dpp v{CS+i}, v{ACC+160+i} row_newbcast:15 row_mask:0xf bank_mask:0xf')
    npk = cfg.get('npk', 4)
    for n, t in enumerate(order): epi(t, n, n >= 11 - npk)
    return finalize(p, 'ffn')

def gen_att(cfg):
    k = K1(True, cfg); p = k.p; k.wmap = {}
    SACC, CSQ, CSV = 34, 42, 58
    QA, KA, VA = 64, 112, 168
    BIAS, MSK, KADR, VP = 224, 236, 240, 64
    V_NM4 = 242; V_BP = 243; TMP = 244
    k.setup()
    for j in range(7):
        k.q_x(j)
        for ks in (2 * j, 2 * j + 1):
            for e in range(2):
                for m in range(2): k.q_w(ks, m, e)
    for ks in range(14):
        for e in range(2): k.q_w(ks, 2, e)
    k.pump()
    k.setup2()
    I(p, 's_lshl_b32 s52, s30, 17\ns_add_u32 s46, s46, s52')
    I(p, 'v_lshlrev_b32 v4, 2, v3\nv_sub_u32 v4, v2, v4\nv_mov_b32 v5, 0xff800000')
    for r in range(4):
        I(p, f'''v_subrev_u32 v6, {r}, v4
                 v_and_b32 v7, 0x80000001, v6
                 v_cmp_eq_u32 vcc, 0, v7
                 v_cndmask_b32 v{BIAS+r}, v5, 0, vcc
                 v_cmp_eq_u32 vcc, 0x80000000, v7
                 v_cndmask_b32 v{BIAS+4+r}, v5, 0, vcc
                 v_cndmask_b32 v{BIAS+8+r}, v{BIAS+4+r}, v5, s[54:55]''')
    I(p, '''v_and_b32 v6, 1, v2
            v_cmp_eq_u32 vcc, 1, v6
            v_mov_b32 v7, 0xffff
            v_mov_b32 v8, 0xffff0000
            v_cndmask_b32 v7, v7, v8, vcc
            v_lshl_add_u32 v6, v3, 2, v6''')
    for b in range(2):
        I(p, f'''v_add_u32 v8, {2*b}, v6
                 v_cmp_gt_u32 vcc, v8, v2
                 v_cndmask_b32 v{MSK+b}, 0, v7, vcc
                 v_cndmask_b32 v{MSK+2+b}, v7, 0, vcc
                 v_subrev_u32 v9, 16, v8
                 v_cndmask_b32 v8, v8, v9, vcc
                 v_lshlrev_b32 v8, 2, v8
                 v_add_u32 v{KADR+b}, {k.TAB2}, v8''')
    I(p, f'v_lshlrev_b32 v4, 4, v3\nv_add_u32 v{V_NM4}, {k.TAB}, v4')
    I(p, f'v_lshlrev_b32 v4, 2, v2\nv_add_u32 v{V_BP}, 192, v4')
    def qa(t, s): return QA + 8 * (t - 1) + 4 * s
    def ka(t, s): return KA + 8 * t + 4 * s
    def va(t, s): return VA + 8 * t + 4 * s
    def wq(ks): return 16 * (ks % 6)
    def wv(ks): return 96 + 8 * ks
    for ks in range(14):
        if ks % 2 == 0:
            k.barrier_x(ks // 2, extra_rd=[('tok_ones', 0), ('tok_zero', 0)] if ks == 0 else [])
        k.pump()
        for m in range(2): k.wfrag(ks, m, wq(ks) + 8 * m)
        k.pump()
        if ks >= 12:
            if ks == 12:
                k.stat_mfma(12, SACC); k.stat_mfma(13, SACC)
                k.stat_final(SACC, TMP)
        for t in [6, 0, 1, 2, 3, 4, 5]:
            f = k.xfrag(t, ks)
            for s in range(2):
                d = vr(ka(t, s), 4); mf(p, d, ar(wq(ks) + 8 + 4 * s, 4), f, d if ks else '0')
            if t:
                for s in range(2):
                    d = vr(qa(t, s), 4); mf(p, d, ar(wq(ks) + 4 * s, 4), f, d if ks else '0')
        if ks < 12: k.stat_mfma(ks, SACC)
    for i in range(8):
        I(p, f'v_mov_b32_dpp v{CSQ+i}, v{qa(6,0)+i} row_newbcast:15 row_mask:0xf bank_mask:0xf')
        I(p, f'v_mov_b32_dpp v{CSQ+8+i}, v{ka(6,0)+i} row_newbcast:15 row_mask:0xf bank_mask:0xf')
    NMR = 60
    def fix_qk(t):
        nm = NMR + t % 4
        I(p, f'ds_read_b32 v{nm}, v{k.V_TABR} offset:{64*t}', rd=[('tok_tab', 0)])
        for base, cs in ([(ka(t, 0), CSQ + 8)] + ([(qa(t, 0), CSQ)] if t else [])):
            for i in range(8): I(p, f'v_fmac_f32 v{base+i}, v{cs+i}, v{nm}')
            for i in range(4): I(p, f'v_cvt_pk_bf16_f32 v{base+i}, v{base+2*i}, v{base+2*i+1}')
    SC = 0.18898223650461362 * 1.4426950408889634
    def s_mfma(t):
        mf(p, vr(qa(t, 1), 4), vr(ka(t, 0), 4), vr(qa(t, 0), 4), vr(BIAS, 4))
        mf(p, vr(ka(t, 1), 4), vr(ka(t - 1, 0), 4), vr(qa(t, 0), 4), vr(BIAS + (8 if t == 1 else 4), 4))
    def softmax(t):
        a, b = qa(t, 1), ka(t, 1)
        T = TMP + 6 * (t % 2)
        I(p, f'ds_read_b32 v{T}, v{k.V_TABR} offset:{1024+64*t}', rd=[('tok_tab', 0)])
        I(p, f'ds_read_b32 v{T+1}, v{KADR} offset:{64*t}', rd=[('tok_tab', 0)])
        I(p, f'ds_read_b32 v{T+2}, v{KADR+1} offset:{64*t}', rd=[('tok_tab', 0)])
        I(p, f'''v_mul_f32 v{T}, {f32(SC)}, v{T}
                 v_mul_f32 v{T+3}, v{T}, v{T+1}
                 v_mul_f32 v{T+4}, v{T}, v{T+2}
                 v_max3_f32 v{a}, v{a}, v{a+1}, v{b}
                 v_max3_f32 v{a+2}, v{a+2}, v{a+3}, v{b+2}
                 v_max_f32 v{a}, v{a}, v{b+1}
                 v_max_f32 v{a+2}, v{a+2}, v{b+3}
                 v_mul_f32 v{a}, v{a}, v{T+3}
                 v_mul_f32 v{a+2}, v{a+2}, v{T+4}
                 v_max_f32 v{a+1}, v{a}, v{a+2}
                 v_max_f32 v{a+3}, v{a}, v{a+2}
                 v_permlane32_swap_b32 v{a+1}, v{a+3}
                 v_max_f32 v{b}, v{a+1}, v{a+3}
                 v_max_f32 v{b+1}, v{a+1}, v{a+3}
                 v_permlane16_swap_b32 v{b}, v{b+1}
                 v_max_f32 v{b}, v{b}, v{b+1}
                 v_sub_f32 v{a}, v{a}, v{b}
                 v_sub_f32 v{a+2}, v{a+2}, v{b}
                 v_exp_f32 v{a}, v{a}
                 v_exp_f32 v{a+2}, v{a+2}
                 v_add_f32 v{a+1}, v{a}, v{a+2}
                 v_add_f32 v{a+3}, v{a}, v{a+2}
                 v_permlane32_swap_b32 v{a+1}, v{a+3}
                 v_mul_f32 v{a}, v{a}, v{T+1}
                 v_mul_f32 v{a+2}, v{a+2}, v{T+2}
                 v_add_f32 v{b}, v{a+1}, v{a+3}
                 v_add_f32 v{b+1}, v{a+1}, v{a+3}
                 v_permlane16_swap_b32 v{b}, v{b+1}
                 v_add_f32 v{b}, v{b}, v{b+1}
                 v_rcp_f32 v{b}, v{b}
                 v_mul_f32 v{a}, v{a}, v{b}
                 v_mul_f32 v{a+2}, v{a+2}, v{b}
                 v_cvt_pk_bf16_f32 v{b+2}, v{a}, v{a}
                 v_cvt_pk_bf16_f32 v{b+3}, v{a+2}, v{a+2}
                 v_and_b32 v{a}, v{b+2}, v{MSK}
                 v_and_b32 v{a+1}, v{b+3}, v{MSK+1}
                 v_and_b32 v{a+2}, v{b+2}, v{MSK+2}
                 v_and_b32 v{a+3}, v{b+3}, v{MSK+3}''')
    for t in range(7): fix_qk(t)
    VKT = cfg.get('VKT', 12)
    def v_mfma(t, ks):
        f = k.xfrag(t, ks)
        for s in range(2):
            d = vr(va(t, s), 4); mf(p, d, f, ar(wv(ks) + 4 * s, 4), d if ks else '0')
    s_at = cfg.get('s_at', {2: 1, 4: 2, 5: 3, 7: 4, 8: 5, 10: 6})
    for ks in range(VKT):
        k.pump()
        k.wfrag(ks, 2, wv(ks))
        k.pump()
        if ks in s_at:
            s_mfma(s_at[ks]); softmax(s_at[ks])
        for t in range(7): v_mfma(t, ks)
    for ks in range(VKT, 14):
        k.pump(); k.wfrag(ks, 2, wv(ks), look=12 + 4 * (14 - ks)); k.pump()
    assert not k.dmaq
    VPK = [34, 224]
    NM4 = [48, 52]
    def fix_v(t, n, pk):
        nm = NM4[n % 2]
        I(p, f'ds_read_b128 {vr(nm,4)}, v{V_NM4} offset:{64*t}', rd=[('tok_tab', 0)])
        for s in range(2):
            a = va(t, s)
            if pk:
                for i in (0, 2):
                    sel = 'op_sel_hi:[1,0,1]' if s == 0 else 'op_sel:[0,1,0]'
                    I(p, f'v_pk_fma_f32 {vr(a+i,2)}, {vr(nm+i,2)}, {vr(CSV,2)}, {vr(a+i,2)} {sel}')
            else:
                for i in range(4): I(p, f'v_fmac_f32 v{a+i}, v{nm+i}, v{CSV+s}')
            for i in range(2): I(p, f'v_cvt_pk_bf16_f32 v{VPK[s]+2*t+i}, v{a+2*i}, v{a+2*i+1}')
    def pv(t):
        for s in range(2):
            mf(p, vr(ka(t, s), 4), vr(VPK[s] + 2 * (t - 1), 4), vr(qa(t, 1), 4), '0')
    def ostore(t):
        a = ka(t, 0); d = qa(t, 0)
        for i in range(4): I(p, f'v_cvt_pk_bf16_f32 v{d+i}, v{a+2*i}, v{a+2*i+1}')
        vo = k.V_STL if t == 6 else k.V_ST
        I(p, f'buffer_store_dwordx4 {vr(d,4)}, v{vo}, s[24:27], s46 offen offset:{256*(t-1)} {cfg["st_flags"]}')
    order = [6, 0, 1, 2, 3, 4, 5]
    for n, t in enumerate(order):
        for ks in range(VKT, 14): v_mfma(t, ks)
        if t == 6:
            for s in range(2):
                I(p, f'ds_bpermute_b32 v{CSV+s}, v{V_BP}, v{va(6,s)+3}')
    for n, t in enumerate(order): fix_v(t, n, False)
    for t in range(1, 7):
        pv(t)
    for t in range(1, 7):
        ostore(t)
    return finalize(p, 'att')

def gen_k2(cfg):
    p = Prog(vm_lat=900)
    NK = 72; GB = 4; NSL = 16
    I(p, 'v_and_b32 v1, 63, v0\nv_lshrrev_b32 v2, 6, v0\nv_readfirstlane_b32 s30, v2')
    I(p, 'v_and_b32 v2, 15, v1\nv_lshrrev_b32 v3, 4, v1')
    I(p, '''v_lshlrev_b32 v4, 1, v3
            v_and_b32 v5, 7, v1
            v_xor_b32 v4, v4, v5
            v_lshrrev_b32 v5, 3, v1
            v_mul_u32_u24 v6, 896, v5
            v_lshl_add_u32 v10, v4, 4, v6
            v_lshlrev_b32 v4, 15, v3
            v_lshl_add_u32 v12, v2, 4, v4''')
    I(p, '''s_mul_i32 s47, s30, 7168
            s_add_u32 s40, s40, s47
            s_lshl_b32 s47, s30, 8
            s_add_u32 s41, s41, s47
            s_lshl_b32 s42, s30, 10''')
    p.add('s_waitcnt lgkmcnt(0)', 'salu', [], R('s', 4, 8) + R('s', 28, 2) + R('s', 36, 2))
    I(p, f's_mov_b32 s12, s28\ns_mov_b32 s13, s29\ns_mov_b32 s14, {AH_BYTES}\ns_mov_b32 s15, 0x20000')
    I(p, 's_mov_b32 s16, s6\ns_mov_b32 s17, s7\ns_mov_b32 s18, 401408\ns_mov_b32 s19, 0x20000')
    I(p, 's_mov_b32 s20, s8\ns_mov_b32 s21, s9\ns_mov_b32 s22, 1605632\ns_mov_b32 s23, 0x20000')
    I(p, 's_mov_b32 s24, s4\ns_mov_b32 s25, s5\ns_mov_b32 s26, 1835008\ns_mov_b32 s27, 0x20000')
    I(p, 's_mov_b32 s32, s10\ns_mov_b32 s33, s11\ns_mov_b32 s34, 1835008\ns_mov_b32 s35, 0x20000')
    AR = 16
    def issue(ks):
        rd = [('tok_free', ks // GB - NSL // GB)] if ks >= NSL else []
        early = (ks - cfg.get('k2_ahead', 6)) * 4
        if ks < 16:
            I(p, f's_add_u32 s43, s40, {28*ks*896}'); srd = 's[16:19]'
        else:
            I(p, f's_add_u32 s43, s40, {32*(ks-16)*896}'); srd = 's[20:23]'
        I(p, f's_add_u32 m0, s42, {(ks % NSL)*4096}')
        vo = 11 if ks == 15 else 10
        I(p, f'buffer_load_dwordx4 v{vo}, {srd}, s43 offen lds', rd=rd, wr=[('tok_bd', ks), ('tok_vq', 0)], early=early)
        I(p, f's_add_u32 s44, s41, {ks*131072}')
        I(p, f'buffer_load_dwordx4 {ar(4*(ks % AR),4)}, v12, s[12:15], s44 offen', wr=[('tok_vq', 0)], early=early)
    nxt = 0
    while nxt < 12: issue(nxt); nxt += 1
    G(p, 's_cmp_eq_u32 s30, 3\ns_cselect_b32 s47, 3, 7')
    I(p, '''v_cmp_ge_u32 vcc, s47, v5
            v_sub_u32 v6, v10, v6
            v_cndmask_b32 v11, v6, v10, vcc''')
    I(p, '''v_lshrrev_b32 v4, 2, v1
            v_lshlrev_b32 v4, 7, v4
            v_and_b32 v6, 3, v1
            v_lshl_add_u32 v4, v6, 3, v4
            v_and_b32 v6, 3, v5
            v_lshl_add_u32 v13, v6, 5, v4
            v_xor_b32 v14, 32, v13
            v_xor_b32 v15, 64, v13
            v_xor_b32 v16, 96, v13''')
    I(p, '''s_mul_i32 s47, s30, 14336
            s_add_u32 s45, s45, s47
            v_mul_u32_u24 v4, 896, v2
            v_lshl_add_u32 v17, v3, 3, v4''')
    SA, DA, XR, WF = 32, 48, 64, 64
    for ks in range(NK):
        if ks % GB == 0:
            g = ks // GB
            rd = [('tok_bd', q) for q in range(ks, ks + GB)]
            wr = [('tok_br', g), ('tok_bar', 0)]
            if g >= 2: rd.append(('tok_rd', g - 2)); wr.append(('tok_free', g - 2))
            p.add('s_barrier', 'bar', rd, wr, early=p.nm - 6)
            while nxt < NK and nxt < max(16, ks + NSL - GB): issue(nxt); nxt += 1
        if ks == 40:
            for ct in range(4):
                I(p, f'buffer_load_dwordx2 {vr(XR+2*ct,2)}, v17, s[24:27], s45 offen offset:{32*ct}', early=p.nm)
        wb = WF + 16 * (ks % 4)
        for ct in range(4):
            for e in range(2):
                I(p, f'ds_read_b64_tr_b16 {ar(wb+4*ct+2*e,2)}, v{13+ct} offset:{(ks % NSL)*4096 + e*2048}',
                  rd=[('tok_br', ks // GB)], wr=[('tok_rd', ks // GB)])
        for ct in range(4):
            d = vr((SA if ks < 16 else DA) + 4 * ct, 4)
            mf(p, d, ar(wb + 4 * ct, 4), ar(4 * (ks % AR), 4), d if ks not in (0, 16) else '0')
    E = 72
    for i in range(16): I(p, f'v_mul_f32 v{E+i}, {f32(-1.4426950408889634)}, v{DA+i}')
    for i in range(16): I(p, f'v_exp_f32 v{E+i}, v{E+i}')
    for i in range(0, 16, 2): I(p, f'v_pk_mul_f32 {vr(SA+i,2)}, {vr(SA+i,2)}, {vr(DA+i,2)}')
    for i in range(16): I(p, f'v_add_f32 v{E+i}, 1.0, v{E+i}')
    for i in range(16): I(p, f'v_rcp_f32 v{E+i}, v{E+i}')
    XU = 88
    for i in range(8):
        I(p, f'v_lshlrev_b32 v{XU+2*i}, 16, v{XR+i}\nv_and_b32 v{XU+2*i+1}, 0xffff0000, v{XR+i}')
    for i in range(0, 16, 2): I(p, f'v_pk_fma_f32 {vr(XU+i,2)}, {vr(SA+i,2)}, {vr(E+i,2)}, {vr(XU+i,2)}')
    for i in range(8): I(p, f'v_cvt_pk_bf16_f32 v{XR+i}, v{XU+2*i}, v{XU+2*i+1}')
    for ct in range(4):
        I(p, f'buffer_store_dwordx2 {vr(XR+2*ct,2)}, v17, s[32:35], s45 offen offset:{32*ct}')
    return finalize(p, 'k2')

def kd(name, vgpr=512, accum=256, sgpr=96):
    return f'''.p2align 6
.amdhsa_kernel {name}
  .amdhsa_next_free_vgpr {vgpr}
  .amdhsa_next_free_sgpr {sgpr}
  .amdhsa_accum_offset {accum}
  .amdhsa_group_segment_fixed_size 0
  .amdhsa_kernarg_size 80
  .amdhsa_user_sgpr_count 2
  .amdhsa_user_sgpr_kernarg_segment_ptr 1
  .amdhsa_system_sgpr_workgroup_id_x 1
.end_amdhsa_kernel
'''
def khead(name):
    return f'.globl {name}\n.p2align 8\n.type {name},@function\n{name}:\n'

def stamp_begin(cfg):
    return '  s_memtime s[80:81]\n  s_memrealtime s[84:85]\n' if cfg['stamp'] else ''
def stamp_end(cfg, region, srd_lo):
    if not cfg['stamp']: return ''
    return f'''  s_waitcnt vmcnt(0)
  s_memtime s[82:83]
  s_memrealtime s[86:87]
  s_waitcnt lgkmcnt(0)
  s_sub_u32 s82, s82, s80
  s_mov_b32 s88, s28
  s_mov_b32 s89, s29
  s_mov_b32 s90, 0x10000000
  s_mov_b32 s91, 0x20000
  s_lshl_b32 s3, s2, 2
  s_add_u32 s3, s3, s30
  s_lshl_b32 s3, s3, 4
  s_add_u32 s3, s3, {region}
  v_mov_b32 v4, s82
  v_mov_b32 v5, s84
  v_mov_b32 v6, s86
  v_mov_b32 v7, s2
  v_mov_b32 v8, 0
  s_mov_b64 exec, 1
  buffer_store_dwordx4 v[4:7], v8, s[88:91], s3 offen
'''

def build(cfg):
    hdr = open('cdna_kernels/' + NAME + '.s.ref').read().split('\n')
    out = [l for l in hdr if l.startswith(';') and '@launch' not in l and 'Override launch' not in l and 'grid=ceil' not in l]
    out.append('; @launch kernel=proj_kernel grid=(256,1,1) block=(256,1,1) lds=163840')
    out.append('; @launch kernel=outp_kernel grid=(224,1,1) block=(256,1,1) lds=65536')
    s = '\n'.join(out) + '\n.amdgcn_target "amdgcn-amd-amdhsa--gfx950"\n.text\n'
    s += khead('proj_kernel')
    s += stamp_begin(cfg)
    s += '''  s_load_dwordx4 s[4:7], s[0:1], 0
  s_load_dwordx4 s[8:11], s[0:1], 32
  s_load_dwordx2 s[28:29], s[0:1], 72
  s_cmp_ge_u32 s2, 256
  s_cbranch_scc1 L_k1_end
  s_and_b32 s56, s2, 7
  s_lshr_b32 s57, s2, 3
  s_cmp_ge_u32 s57, 21
  s_cbranch_scc1 L_att
  ; ffn: rb = 3*(j>>1) + s/7 ; cb = 7*(j&1) + s%7
  s_mul_i32 s58, s57, 37
  s_lshr_b32 s58, s58, 8
  s_mul_i32 s59, s58, 7
  s_sub_u32 s59, s57, s59
  s_lshr_b32 s60, s56, 1
  s_mul_i32 s60, s60, 3
  s_add_u32 s58, s58, s60
  s_and_b32 s60, s56, 1
  s_mul_i32 s60, s60, 7
  s_add_u32 s59, s59, s60
  s_mul_i32 s33, s58, 171
  s_min_u32 s33, s33, 1873
  s_lshl_b32 s43, s59, 8
  s_lshl_b32 s46, s59, 19
  s_add_u32 s46, s46, 0x200000
  s_lshl_b32 s60, s33, 4
  s_add_u32 s46, s46, s60
'''
    s += gen_ffn(cfg)
    s += stamp_end(cfg, 0x4000000, 0)
    s += '''  s_endpgm
L_att:
  s_lshr_b32 s58, s56, 2
  s_mul_i32 s58, s58, 11
  s_add_u32 s58, s58, s57
  s_sub_u32 s58, s58, 21
  s_and_b32 s59, s56, 3
  s_mul_i32 s60, s58, 94
  s_min_u32 s60, s60, 1953
  s_sub_u32 s33, s60, 16
  s_mul_i32 s43, s59, 224
  s_lshl_b32 s46, s59, 19
  s_lshl_b32 s60, s60, 4
  s_add_u32 s46, s46, s60
  s_cmp_eq_u32 s58, 0
  s_cselect_b64 s[54:55], -1, 0
'''
    s += gen_att(cfg)
    s += stamp_end(cfg, 0x4000000, 0)
    s += 'L_k1_end:\n  s_endpgm\n'
    s += khead('outp_kernel')
    s += stamp_begin(cfg)
    s += '''  s_load_dwordx2 s[4:5], s[0:1], 0
  s_load_dwordx2 s[6:7], s[0:1], 16
  s_load_dwordx4 s[8:11], s[0:1], 48
  s_load_dwordx2 s[28:29], s[0:1], 72
  s_cmp_ge_u32 s2, 224
  s_cbranch_scc1 L_k2_end
  s_and_b32 s56, s2, 7
  s_lshr_b32 s57, s2, 3
  s_mul_i32 s58, s57, 37
  s_lshr_b32 s58, s58, 8
  s_mul_i32 s59, s58, 7
  s_sub_u32 s59, s57, s59
  s_lshl_b32 s60, s56, 2
  s_add_u32 s58, s58, s60
  s_lshl_b32 s40, s59, 7
  s_lshl_b32 s41, s58, 10
  s_mul_i32 s45, s58, 57344
  s_add_u32 s45, s45, s40
'''
    s += gen_k2(cfg)
    s += stamp_end(cfg, 0x4010000, 0)
    s += 'L_k2_end:\n  s_endpgm\n'
    s += '.section .rodata,"a"\n' + kd('proj_kernel') + kd('outp_kernel', vgpr=256, accum=128)
    return s

if __name__ == '__main__':
    cfg = dict(CFG)
    out = 'cdna_kernels/' + NAME + '.s'
    for a in sys.argv[1:]:
        if a.startswith('out='): out = a[4:]; continue
        k, v = a.split('=', 1)
        cfg[k] = eval(v)
    open(out, 'w').write(build(cfg))
```

```python
import re

def R(p, a, n=1):
    return [(p, a + i) for i in range(n)]
def vr(a, n=1, p='v'):
    return f'{p}{a}' if n == 1 else f'{p}[{a}:{a+n-1}]'
def ar(a, n=1): return vr(a, n, 'a')
def sr(a, n=1): return vr(a, n, 's')

VALU_KINDS = ('valu', 'trans', 'pk', 'swap', 'dpp', 'rfl')
DS_KINDS = ('dsr', 'dsw')
VM_KINDS = ('vml', 'dma', 'vms')
SC_KINDS = ('salu', 'bar', 'wait', 'nop')

class Op:
    __slots__ = ('text', 'kind', 'rd', 'wr', 'early', 'dead', 'idx', 'preds', 'issue', 'maybe', 'srcc', 'glue', 'lat', 'done')
    def __init__(self, text, kind, rd=(), wr=(), early=-1e9, dead=None, maybe=False, srcc=(), lat=None):
        self.text, self.kind = text, kind
        self.rd, self.wr = list(rd), list(wr)
        self.early, self.dead = early, dead
        self.maybe = maybe
        self.srcc = list(srcc)
        self.glue = None
        self.lat = lat
        self.preds = []
        self.issue = None
        self.done = False

class Prog:
    def __init__(self, vm_lat=700, ds_lat=110, gap=16):
        self.gap = gap
        self.fixed = 0
        self.tail_fixed = None
        self.ops = []
        self.vm_lat, self.ds_lat = vm_lat, ds_lat
        self.nm = 0
    def add(self, text, kind, rd=(), wr=(), pre=(), post=(), **kw):
        o = Op(text, kind, rd, wr, **kw)
        if pre or post:
            o.glue = (list(pre), list(post))
        o.idx = len(self.ops)
        if kind == 'mfma':
            self.nm += 1
        self.ops.append(o)
        return o
    def latency(self, p, c, raw):
        if not raw:
            if p.kind in DS_KINDS or p.kind in VM_KINDS:
                return 4
            if p.kind == 'mfma':
                return 16
            return 4
        if p.lat is not None: return p.lat
        if p.kind in VM_KINDS: return self.vm_lat
        if p.kind in DS_KINDS: return self.ds_lat
        if p.kind == 'mfma':
            pw = {r for r in p.wr if r[0] in 'va'}
            if c.kind == 'mfma' and set(c.srcc) == pw and not (pw & (set(c.rd) - set(c.srcc))):
                return 0
            return 44
        if p.kind in VALU_KINDS:
            if c.kind in ('mfma', 'swap', 'dpp'): return 12
            if p.kind == 'trans': return 12
            return 4
        return 4
    def build(self):
        lastw, readers = {}, {}
        for o in self.ops:
            pr = {}
            for r in o.rd:
                if r in lastw:
                    p = lastw[r]; pr[p.idx] = max(pr.get(p.idx, 0), self.latency(p, o, True))
            for r in o.wr:
                if r in lastw:
                    p = lastw[r]
                    isreg = r[0] in 'vas' and isinstance(r[1], int)
                    pr[p.idx] = max(pr.get(p.idx, 0), self.latency(p, o, isreg and (p.kind in VM_KINDS + DS_KINDS + ('mfma',)) and not (o.kind == 'mfma' and p.kind == 'mfma')))
                for p in readers.get(r, ()):
                    if p is not o:
                        pr[p.idx] = max(pr.get(p.idx, 0), self.latency(p, o, False))
            o.preds = list(pr.items())
            for r in o.rd:
                readers.setdefault(r, []).append(o)
            for r in o.wr:
                lastw[r] = o; readers[r] = []
    def schedule(self, verbose=False):
        self.build()
        allops = self.ops
        ops = allops, None
        ops = allops
        tf = self.tail_fixed if self.tail_fixed is not None else len(ops)
        mf = [o for o in ops[:tf] if o.kind == 'mfma']
        mpos = {o.idx: i for i, o in enumerate(mf)}
        INF = len(mf) + 1000
        dl = [INF + o.idx * 1e-6 for o in ops]
        for o in reversed(ops):
            if o.idx in mpos: dl[o.idx] = mpos[o.idx]
            if o.dead is not None: dl[o.idx] = min(dl[o.idx], o.dead)
            for (p, lat) in o.preds:
                dl[p] = min(dl[p], dl[o.idx] - lat / float(self.gap) - 0.01)
        fill = [o for o in ops[:tf] if o.kind != 'mfma']
        fill.sort(key=lambda o: (dl[o.idx], o.idx))
        out = []
        t = 0
        def ready_time(o):
            rt = 0
            for (p, lat) in o.preds:
                q = ops[p]
                if q.issue is None: return None
                rt = max(rt, q.issue + lat)
            return rt
        def cost(o):
            c = 8 if o.kind in ('trans', 'swap') else 4
            if o.glue: c += 4 * (len(o.glue[0]) + len(o.glue[1]))
            return c
        seqno = {}
        waited = {'vm': -1, 'lg': -1}
        def q_of(o):
            return 'vm' if o.kind in VM_KINDS else ('lg' if o.kind in DS_KINDS else None)
        def needs_wait(o):
            for (p, lat) in o.preds:
                q = q_of(ops[p])
                if q and lat > 4 and p in seqno and seqno[p] > waited[q]: return True
            return False
        def mark_wait(o):
            for (p, lat) in o.preds:
                q = q_of(ops[p])
                if q and lat > 4 and p in seqno: waited[q] = max(waited[q], seqno[p])
        def emit(o, t):
            mark_wait(o)
            o.issue = t; o.done = True
            if q_of(o): seqno[o.idx] = len(out)
            out.append(o)
        def force(o):
            nonlocal t
            for (p, lat) in sorted(o.preds):
                if ops[p].issue is None:
                    assert ops[p].kind != 'mfma', f'mfma order violated: {o.text} needs {ops[p].text}'
                    force(ops[p])
            rt = ready_time(o)
            o.done = True
            while rt > t:
                q = pick(cur_i[0], t, VALU_KINDS + DS_KINDS + VM_KINDS + ('salu',), 64)
                if q is None: break
                emit(q, t); t += cost(q)
            t = max(t, rt)
            emit(o, t); t += cost(o)
        cur_i = [-1]
        def pick(cur, tnow, allow, budget, maxdl=1e18):
            for o in fill:
                if o.done: continue
                if dl[o.idx] > maxdl: return None
                if o.early > cur: continue
                if o.kind not in allow: continue
                c = cost(o)
                if c > budget: continue
                rt = ready_time(o)
                if rt is None or rt > tnow: continue
                return o
            return None
        stall = 0
        for o in ops[:self.fixed]:
            emit(o, t); t += cost(o)
        for o in sorted([q for q in fill if q.dead is not None and q.dead <= -500], key=lambda q: (q.dead, q.idx)):
            if o.issue is None: force(o)
        for i, m in enumerate(mf):
            cur_i[0] = i - 1
            for (p, lat) in sorted(m.preds):
                if ops[p].issue is None: force(ops[p])
            rt = ready_time(m)
            while rt > t:
                o = pick(i - 1, t, VALU_KINDS + DS_KINDS + VM_KINDS + SC_KINDS, 64)
                if o is None: break
                emit(o, t); t += cost(o)
            if rt > t: stall += rt - t; t = rt
            emit(m, t)
            t0 = t
            fill = [o for o in fill if not o.done]
            VEC2 = DS_KINDS + VM_KINDS + ('valu', 'trans', 'swap', 'dpp', 'rfl')
            nxt = mf[i + 1] if i + 1 < len(mf) else None
            wait_needed = nxt is not None and needs_wait(nxt)
            used = 0
            s1 = pick(i, t0 + 4, ('salu', 'bar'), 4)
            if s1 is not None and (s1.kind == 'bar' or not wait_needed):
                if needs_wait(s1): used += 4; mark_wait(s1)
                emit(s1, t0 + 4); slot1 = True
            else:
                slot1 = False
            if wait_needed and slot1: used += 4
            if used < 8:
                o = pick(i, t0 + 8, VEC2 + ('salu',), 16 if used == 0 else 4)
                if o is not None and slot1 and not wait_needed and needs_wait(o):
                    used += 4; wait_needed = True
                if o is not None:
                    if needs_wait(o): wait_needed = True
                    mark_wait(o)
                    c = cost(o)
                    if o.glue and not slot1 and not wait_needed: c -= 4
                    emit(o, t0 + 8); used += c
                    if used <= 4:
                        o2 = pick(i, t0 + 12, ('valu', 'dpp', 'rfl', 'salu'), 4)
                        if o2 is not None and not (slot1 and not wait_needed and needs_wait(o2)):
                            mark_wait(o2)
                            emit(o2, t0 + 12); used += 4
            if self.gap > 16:
                while 8 + used < self.gap - 4:
                    o = pick(i, t0 + 8 + used, ('valu', 'trans', 'swap', 'dpp', 'rfl', 'salu'), self.gap - 8 - used)
                    if o is None: break
                    emit(o, t0 + 8 + used); used += cost(o)
            t = t0 + max(self.gap, 8 + used)
            tt = t0 + 8 + used
            while True:
                o = pick(i, tt, VALU_KINDS + DS_KINDS + VM_KINDS + SC_KINDS, 64, maxdl=i + 0.5)
                if o is None: break
                emit(o, tt); tt += cost(o)
            t = max(t, tt)
        fill = [o for o in fill if not o.done]
        while fill:
            o = pick(1e9, t, VALU_KINDS + DS_KINDS + VM_KINDS + SC_KINDS, 64)
            if o is None:
                cand = [(ready_time(o), k) for k, o in enumerate(fill) if ready_time(o) is not None]
                tt, k = min(cand); stall += tt - t; t = tt; continue
            emit(o, t); t += cost(o)
            fill = [o for o in fill if not o.done]
        for o in ops[tf:]:
            rt = ready_time(o)
            if rt > t: stall += rt - t; t = rt
            emit(o, t); t += (16 if o.kind == 'mfma' else cost(o))
        self.est = (t, stall, len(mf))
        return out

def expand(seq):
    res = []
    for o in seq:
        if o.glue:
            res += o.glue[0]; res.append(o); res += o.glue[1]
        else:
            res.append(o)
    return res

def insert_waits(seq, vm0=(), lg0=()):
    out = []
    vmq, lgq = [], []
    pend = {}
    pos = {}
    for o in seq:
        needv, needl = None, None
        for r in list(o.rd) + [w for w in o.wr if w[0] in 'vas' and isinstance(w[1], int)]:
            p = pend.get(r)
            if p is None: continue
            if p in vmq:
                k = vmq.index(p); needv = k if needv is None else max(needv, k)
            elif p in lgq:
                if o.kind in DS_KINDS and not (r[0] in 'vas' and isinstance(r[1], int)): continue
                k = lgq.index(p); needl = k if needl is None else max(needl, k)
        if needv is not None or needl is not None:
            ins = len(out)
            j = len(out) - 1
            lim = max(pos[id(vmq[needv])] if needv is not None else -1, pos[id(lgq[needl])] if needl is not None else -1)
            steps = 0
            while j > lim and steps < 4:
                if out[j].kind == 'mfma':
                    ins = j + 1; break
                if out[j].kind == 'bar': break
                j -= 1; steps += 1
            def cnt(q, k):
                return sum(1 for x in q[k + 1:] if pos[id(x)] < ins and not x.maybe)
            v = min(63, cnt(vmq, needv)) if needv is not None else None
            l = min(15, cnt(lgq, needl)) if needl is not None else None
            if ins < len(out) and out[ins].kind == 'wait':
                w = out[ins]
                pv, pl = w.rd
                v = pv if v is None else (v if pv is None else min(v, pv))
                l = pl if l is None else (l if pl is None else min(l, pl))
                w.rd = (v, l)
            else:
                w = Op('', 'wait'); w.rd = (v, l)
                out.insert(ins, w)
                for x in out[ins + 1:]:
                    if id(x) in pos: pos[id(x)] += 1
            if needv is not None: vmq = vmq[needv + 1:]
            if needl is not None: lgq = lgq[needl + 1:]
        pos[id(o)] = len(out)
        out.append(o)
        if o.kind in VM_KINDS:
            vmq.append(o)
            for w in o.wr:
                if w[0] not in ('s', 'vcc'): pend[w] = o
        elif o.kind in DS_KINDS:
            lgq.append(o)
            for w in o.wr: pend[w] = o
        else:
            for w in o.wr: pend.pop(w, None)
    for w in out:
        if w.kind == 'wait' and not w.text:
            v, l = w.rd
            w.text = 's_waitcnt' + (f' vmcnt({v})' if v is not None else '') + (f' lgkmcnt({l})' if l is not None else '')
            w.rd = []
    return out

def insert_nops(seq):
    out = []
    hist = []
    st = 0
    nn = 0
    for o in seq:
        need = 0
        rd, wr = {r for r in o.rd if not r[0].startswith('tok')}, {r for r in o.wr if not r[0].startswith('tok')}
        for (p, ps) in reversed(hist):
            d = st - ps - 1
            if d >= 12: break
            pw, prd = {r for r in p.wr if not r[0].startswith('tok')}, set(p.rd)
            req = 0
            if p.kind == 'mfma':
                if o.kind == 'mfma':
                    ab = rd - set(o.srcc)
                    if pw & ab: req = 8
                    elif pw & set(o.srcc): req = 0 if set(o.srcc) == pw else 6
                    elif pw & wr: req = 0 if wr == pw else 6
                elif o.kind in VALU_KINDS + DS_KINDS + VM_KINDS:
                    if pw & (rd | wr): req = 8
                    elif set(p.srcc) & wr: req = 3
            elif p.kind in VALU_KINDS:
                vw = {r for r in pw if r[0] in 'va'}
                sw = {r for r in pw if r[0] == 's' or r == ('vcc', 0)}
                if o.kind == 'mfma' and vw & rd: req = 2
                if o.kind in ('swap', 'dpp') and vw & rd: req = 2
                if o.kind == 'rfl' and vw & rd: req = max(req, 1)
                if p.kind == 'trans' and o.kind in VALU_KINDS and o.kind != 'trans' and vw & rd: req = max(req, 1)
                if sw & rd:
                    if o.kind in VALU_KINDS: req = max(req, 2)
                    if o.kind in VM_KINDS: req = max(req, 5)
                    if o.kind == 'salu': req = max(req, 1)
            elif p.kind in ('vms', 'dsw'):
                if {r for r in prd if r[0] in 'va'} & wr: req = 2
            elif p.kind == 'salu':
                if ('m0', 0) in pw and o.kind == 'dma': req = 1
            need = max(need, req - d)
        if need > 0:
            n = Op(f's_nop {need-1}', 'nop'); out.append(n); st += need; nn += need
        out.append(o)
        hist.append((o, st)); st += 1
        if len(hist) > 40: hist = hist[-20:]
    return out, nn

def finalize(prog, name='', stamps=0):
    seq = expand(prog.schedule())
    seq = insert_waits(seq)
    seq, nn = insert_nops(seq)
    if isinstance(stamps, tuple):
        res, k, nb = [], 0, 0
        for o in seq:
            res.append(o)
            if o.kind == 'bar':
                if nb >= stamps[1] and k < 8:
                    res.append(Op(f's_memtime s[{82+2*k}:{83+2*k}]', 'nop')); k += 1
                nb += 1
        res.append(Op('s_memtime s[98:99]', 'nop'))
        seq = res
    elif stamps == 'bars':
        res, k = [], 0
        for o in seq:
            res.append(o)
            if (o.kind == 'bar' or (o.kind == 'rfl' and 'L_pf' in o.text) or (o.kind == 'salu' and 'L_pl' in o.text)) and k < 8:
                res.append(Op(f's_memtime s[{82+2*k}:{83+2*k}]', 'nop')); k += 1
        res.append(Op('s_memtime s[98:99]', 'nop'))
        seq = res
    elif stamps == 'pro':
        res, k, seen = [], 0, set()
        def st():
            nonlocal k
            if k < 8: res.append(Op(f's_memtime s[{82+2*k}:{83+2*k}]', 'nop')); k += 1
        st()
        nb = 0
        for i, o in enumerate(seq):
            if o.kind == 'salu' and o.text.startswith('s_waitcnt lgkmcnt(0)'): st()
            if o.kind == 'wait' and 'vmcnt' in o.text and 'w' not in seen: seen.add('w'); st()
            if o.kind == 'bar' and nb < 2: st()
            res.append(o)
            if o.kind == 'salu' and o.text.startswith('s_waitcnt lgkmcnt(0)'): st()
            if o.kind == 'bar':
                nb += 1
                if nb <= 2: st()
        res.append(Op('s_memtime s[98:99]', 'nop'))
        seq = res
    elif stamps:
        res, n, k = [], 0, 0
        for o in seq:
            res.append(o)
            if o.kind == 'mfma':
                if n % stamps == 0 and k < 8:
                    res.append(Op(f's_memtime s[{82+2*k}:{83+2*k}]', 'nop')); k += 1
                n += 1
        res.append(Op('s_memtime s[98:99]', 'nop'))
        seq = res
    from collections import Counter
    c = Counter(o.kind for o in seq)
    print(f'[{name}] est cycles {prog.est[0]} stall {prog.est[1]} mfma {prog.est[2]} nop-states {nn} mix {dict(c)}')
    return '\n'.join('  ' + o.text for o in seq) + '\n'


_reg = re.compile(r'\b([vas])(\d+)\b|\b([vas])\[(\d+):(\d+)\]|\b(vcc|exec|m0)\b')
def regs_of(tok):
    res = []
    for m in _reg.finditer(tok):
        if m.group(1): res.append((m.group(1), int(m.group(2))))
        elif m.group(3): res += R(m.group(3), int(m.group(4)), int(m.group(5)) - int(m.group(4)) + 1)
        else: res.append((m.group(6), 0))
    return res
def split_ops(text):
    name, _, rest = text.strip().partition(' ')
    toks, depth, cur = [], 0, ''
    for ch in rest:
        if ch == '[': depth += 1
        if ch == ']': depth -= 1
        if ch == ',' and depth == 0:
            toks.append(cur.strip()); cur = ''
        else: cur += ch
    toks.append(cur.strip())
    last = toks[-1].split(' ')
    toks[-1] = last[0]
    return name, toks
TRANS = ('v_exp_f32', 'v_rcp_f32', 'v_rsq_f32', 'v_sqrt_f32', 'v_log_f32')
NOSCC = ('s_mov_b32', 's_mov_b64', 's_mul_i32', 's_cselect_b32', 's_cselect_b64', 's_movk_i32')
def auto(text):
    name, t = split_ops(text)
    if name.startswith('v_mfma'):
        c = regs_of(t[3])
        return 'mfma', regs_of(t[1]) + regs_of(t[2]) + c, regs_of(t[0]), c
    if name.startswith('ds_read') or name == 'ds_bpermute_b32':
        return 'dsr', [r for x in t[1:] for r in regs_of(x)], regs_of(t[0]), ()
    if name.startswith('ds_write'):
        return 'dsw', [r for x in t for r in regs_of(x)], [], ()
    if name.startswith('buffer_load'):
        if text.rstrip().endswith('lds'):
            return 'dma', [r for x in t for r in regs_of(x)] + [('m0', 0)], [], ()
        return 'vml', [r for x in t[1:] for r in regs_of(x)], regs_of(t[0]), ()
    if name.startswith('buffer_store'):
        return 'vms', [r for x in t for r in regs_of(x)], [], ()
    if name.startswith('s_'):
        if name.startswith('s_cmp') or name.startswith('s_bitcmp'):
            return 'salu', [r for x in t for r in regs_of(x)], [], ()
        rd = [r for x in t[1:] for r in regs_of(x)]
        wr = regs_of(t[0])
        return 'salu', rd, wr, ()
    rd = [r for x in t[1:] for r in regs_of(x)]
    wr = regs_of(t[0])
    if name.startswith('v_permlane'):
        return 'swap', wr + rd, wr + rd, ()
    if name.startswith('v_fmac') or name.startswith('v_dot2c'): rd += wr
    if name.endswith('_dpp'): return 'dpp', rd + wr, wr, ()
    if name == 'v_readfirstlane_b32': return 'rfl', rd, wr, ()
    if name.startswith('v_pk_') or name.startswith('v_dot'): return 'pk', rd, wr, ()
    if name in TRANS: return 'trans', rd, wr, ()
    return 'valu', rd, wr, ()
def mk(text, rd=(), wr=(), **kw):
    k, r, w, c = auto(text)
    return Op(text, k, r + list(rd), w + list(wr), srcc=c, **kw)
def I(p, text, rd=(), wr=(), **kw):
    o = None
    for line in text.split('\n'):
        line = line.strip()
        if not line: continue
        assert not line.startswith('s_cmp') and not line.startswith('s_cselect')
        k, r, w, c = auto(line)
        o = p.add(line, k, r + list(rd), w + list(wr), srcc=c, **kw)
    return o

def G(p, text, **kw):
    lines = [l.strip() for l in text.split('\n') if l.strip()]
    rd, wr = [], []
    for l in lines:
        k, r, w, c = auto(l)
        assert k == 'salu'
        rd += r; wr += w
    return p.add('\n  '.join(lines), 'salu', rd, wr, **kw)

def timeline(prog, step=47):
    mf = [o for o in prog.ops if o.kind == 'mfma']
    if mf: print('   t@mfma:', [(i, mf[i].issue) for i in range(0, len(mf), step)], 'last', mf[-1].issue)
```

```python
import sys, struct
sys.path.insert(0, 'gen')
from sched import *

NAME = 'recurrent_scan__sliding_local_dilated__glu_gated_bilinear__prompt'
CH = 33792
AH_BYTES = 288 * CH
FLG = AH_BYTES
STO = AH_BYTES + 256 * 128
WS_BYTES = STO + 2048 * 16
CSL, CVL, PFL, LA, RA = 1536, 2560, 3072, 3584, 26112
CFG = dict(ne=10, att_loop=6, att_sp=0.7, pfx=0, ofl='nt', phi=0, lk0=6, first=7, first_a=8, lims=[(4,4),(5,4),(5,4),(6,3.5)], KT=12, stamp=False, st_flags='sc1', pf2=0, k2_rot=2, pfC=8)
def f32(x): return '0x%08x' % struct.unpack('<I', struct.pack('<f', x))[0]
def mf(p, d, a, b, c, **kw): return I(p, f'v_mfma_f32_16x16x32_bf16 {d}, {a}, {b}, {c}', **kw)
ROWSEQ = [0, 0, 1, 2, 3, 4, 0, 5, 6, 7, 8, 1, 2, 3, 4, 0, 5, 6, 7]
def rowaddr(r): return LA if r == 8 else RA + 16384 * r
BLOCKS = [('a', 48), ('a', 64), ('a', 0), ('a', 16), ('a', 32)] + [('v', 64 + 16 * i) for i in range(5)]
def fr(n, o, c): b = BLOCKS[n % 10]; return vr(b[1] + o, c, b[0])

def bdma(p, n, rd=(), **kw):
    for h in range(2):
        v = 12 if h == 0 else 9
        I(p, f'v_add_u32 v12, s72, v11' if h == 0 else 'v_add_u32 v9, 7168, v12')
        I(p, f's_add_u32 m0, s76, {rowaddr(ROWSEQ[n]) + 1024*h}')
        kk = dict(kw)
        if 'early' in kk: kk['early'] += 2 * h; kk['dead'] += 2 * h
        I(p, f'buffer_load_dwordx4 v{v}, s[68:71], 0 offen lds', rd=list(rd), wr=[('tok_bd', n), ('tok_vq', 0)], **kk)
    G(p, 's_add_u32 s72, s72, s75\ns_cmp_eq_u32 s72, s73\ns_cselect_b32 s72, s74, s72')
def tr_setup(p, V, base, T):
    I(p, f"""v_lshrrev_b32 v{T}, 2, v1
            v_lshlrev_b32 v{T}, 7, v{T}
            v_and_b32 v{T+1}, 3, v1
            v_lshl_add_u32 v{T}, v{T+1}, 3, v{T}
            v_bfe_u32 v{T+1}, v1, 3, 2
            v_xor_b32 v{T+1}, s32, v{T+1}
            v_lshl_add_u32 v{T}, v{T+1}, 5, v{T}
            s_lshl_b32 s47, s32, 12
            s_add_u32 s47, s47, {base}
            v_add_u32 v{V}, s47, v{T}
            v_xor_b32 v{V+1}, 32, v{V}
            v_xor_b32 v{V+2}, 64, v{V}
            v_xor_b32 v{V+3}, 96, v{V}""")

class S1:
    def __init__(self, att, grp, cfg):
        self.att, self.grp, self.cfg = att, grp, cfg
        self.p = Prog(vm_lat=cfg.get('vm_lat', 900), gap=32, ds_lat=cfg.get('dsl_a' if att else 'dsl_f', 110))
        if att:
            self.NT, self.NI, self.pitch, self.NM = 7, 11, 2688, 3
            XA, XB, XC = RA, RA + 16384, RA + 71680
            w0 = RA + 30720
            self.WS = [w0 + 8192 * i for i in range(5)] + [RA + 86016 + 8192 * i for i in range(6)]
            self.wph = 2
        else:
            self.NT, self.NI, self.pitch, self.NM = 11, 8, 3584, 2
            XA, XB, XC = RA, RA + 22528, RA + 94208
            self.WS = [RA + 45056 + 8192 * i for i in range(6)] + [RA + 116736, RA + 124928]
            self.wph = 4
        assert self.WS[-1] + 8192 <= 163840
        self.XS = [XB, XC, XA, LA, XB, XC, LA]
        self.XPREV = {4: 0, 5: 1, 6: 3}
        self.WB = self.WS[0]
        self.ONES = self.NT * 16 - 1
        self.NU = (self.NT + 3) // 4
        self.dmaq, self.have, self.wmap, self.pending_free = [], set(), {}, []
        self.xring = 0; self.nimg = 0; self.lastbar = 0
        self.t0 = (0 if att else 6) * grp
        self.rot = cfg.get('phi', 0) if not att else cfg.get('phia', 0)
    V_OFFX, V_XB, V_PF, V_TR, V_XH = 10, 13, 15, 17, 21
    V_TABW, V_TABR, V_OFFW, V_CSA = 30, 27, 32, 34
    def waddr(self, u): return self.WS[(u + self.wph) % self.NI]
    def head(self):
        p, att = self.p, self.att
        p.add('s_load_dwordx2 s[60:61], s[0:1], 64', 'salu', [], [])
        p.add('s_load_dwordx2 s[72:73], s[0:1], 56', 'salu', [], [])
        I(p, 'v_and_b32 v1, 63, v0\ns_and_b32 s29, s30, 3\ns_and_b32 s31, s30, 1\ns_lshr_b32 s32, s30, 1')
        I(p, 'v_lshrrev_b32 v3, 4, v1\nv_and_b32 v2, 15, v1')
        I(p, 's_mov_b32 s14, 1835008\ns_mov_b32 s15, 0x20000\ns_mov_b32 s19, 0x20000')
        I(p, f's_mov_b32 s18, {1204224 if att else 1605632}')
        if not att: I(p, 's_mov_b32 s22, 1605632\ns_mov_b32 s23, 0x20000')
        I(p, f"""s_lshl_b32 s47, s32, 2
                 s_and_b32 s47, s47, 4
                 v_or_b32 v4, s47, v3
                 v_lshlrev_b32 v5, 1, v4
                 v_xor_b32 v5, v5, v2
                 s_mul_i32 s52, s30, {4*self.pitch}
                 s_add_u32 s52, s52, s43
                 v_mul_u32_u24 v6, {self.pitch}, v3
                 v_lshl_add_u32 v6, v5, 4, v6
                 v_add_u32 v{self.V_OFFW}, s52, v6""")
        if att:
            I(p, f'v_cmp_le_u32 vcc, 14, v5\nv_mov_b32 v6, 0x40000000\nv_cndmask_b32 v{self.V_OFFW}, v{self.V_OFFW}, v6, vcc')
        I(p, f"""v_add_u32 v{self.V_OFFW+1}, {32*self.pitch}, v{self.V_OFFW}
                 s_lshl_b32 s41, s30, 10
                 s_lshl_b32 s53, s31, 2
                 v_or_b32 v4, s53, v3
                 v_and_b32 v5, 7, v1
                 v_xor_b32 v4, v4, v5
                 v_lshrrev_b32 v5, 3, v1
                 v_mul_u32_u24 v5, 896, v5
                 v_lshl_add_u32 v{self.V_OFFX}, v4, 4, v5
                 s_lshl_b32 s39, s30, 3
                 s_add_u32 s39, s39, s33
                 s_mul_i32 s39, s39, 896""")
        if self.rot == -1:
            I(p, f's_mul_i32 s28, s57, {self.cfg.get("rmul", 1)}\ns_mul_i32 s47, s28, 9363\ns_lshr_b32 s47, s47, 16\ns_mul_i32 s47, s47, 7\ns_sub_u32 s28, s28, s47')
        elif self.rot == -2:
            I(p, 's_and_b32 s28, s57, 1\ns_lshl_b32 s28, s28, 2')
        elif self.rot == -3:
            I(p, 's_mul_i32 s47, s57, 37\ns_lshr_b32 s47, s47, 8\ns_add_u32 s28, s57, s47\ns_mul_i32 s47, s28, 43\ns_lshr_b32 s47, s47, 7\ns_mul_i32 s47, s47, 3\ns_sub_u32 s28, s28, s47\ns_lshl_b32 s28, s28, 1')
        elif self.rot:
            I(p, f's_lshl_b32 s28, s56, 2\ns_lshr_b32 s28, {self.rot}, s28\ns_and_b32 s28, s28, 7')
        for n in range(self.NU):
            if n == 0 and att: I(p, 's_max_i32 s34, s39, 0')
            else: I(p, f's_add_u32 s{34+n}, s39, {n*64*896}')
        if self.rot:
            I(p, 's_lshl_b32 s100, s28, 7')
            for n in range(self.NU): I(p, f's_add_u32 s{34+n}, s{34+n}, s100')
        G(p, """s_cmp_eq_u32 s30, 5
                s_cselect_b32 s45, 0x00ffffff, -1
                s_cmp_ge_u32 s30, 6
                s_cselect_b32 s45, 0, s45
                s_cselect_b32 s44, 0, -1""")
        p.add('s_waitcnt lgkmcnt(0)', 'salu', [], R('s', 12, 2) + R('s', 16, 2) + R('s', 20, 2) + R('s', 24, 2) + R('s', 4, 2) + R('s', 8, 2) + R('s', 60, 2) + R('s', 68, 2) + R('s', 72, 2))
        for j in range(7):
            for m in range(self.NM): self.q_w(2 * j, m)
            for n in range(self.NU): self.dmaq.append(('x', j, n))
            for m in range(self.NM): self.q_w(2 * j + 1, m)
        self.pump(limit=5, at=-999)
        p.add(';SPLIT', 'salu', [], [])
        p.fixed = len(p.ops)
    def setup_b(self, V_ST):
        p, att = self.p, self.att
        self.V_ST = V_ST
        I(p, f's_mov_b32 s27, 0x20000\ns_mov_b32 s26, {WS_BYTES}')
        I(p, f"""v_lshrrev_b32 v4, 1, v2
                 v_xor_b32 v4, v4, v3
                 v_lshlrev_b32 v5, 7, v2
                 v_add_u32 v5, {self.t0*2048}, v5
                 v_lshl_add_u32 v{self.V_XB}, v4, 4, v5
                 v_xor_b32 v{self.V_XB+1}, 64, v{self.V_XB}
                 v_add_u32 v{self.V_XH}, 65536, v{self.V_XB}
                 v_add_u32 v{self.V_XH+1}, 65536, v{self.V_XB+1}""")
        I(p, f"""v_bfe_u32 v4, v1, 2, 2
                 v_lshl_add_u32 v5, v3, 3, v4
                 v_lshlrev_b32 v5, 8, v5
                 v_add_u32 v5, {self.WB}, v5
                 v_and_b32 v6, 1, v3
                 v_lshl_add_u32 v4, v6, 2, v4
                 v_lshlrev_b32 v4, 5, v4
                 v_and_b32 v6, 3, v1
                 s_mul_i32 s52, s29, {56 if att else 64}
                 v_lshl_add_u32 v7, v6, 3, s52
                 v_xor_b32 v8, v7, v4
                 v_add_u32 v{self.V_TR}, v8, v5
                 v_add_u32 v7, 32, v7""")
        if att: I(p, 'v_cmp_eq_u32 vcc, 3, v6\nv_mov_b32 v8, 224\nv_cndmask_b32 v7, v7, v8, vcc')
        I(p, f'v_xor_b32 v8, v7, v4\nv_add_u32 v{self.V_TR+1}, v8, v5')
        I(p, f'v_add_u32 v{self.V_TR+2}, 49152, v{self.V_TR}\nv_add_u32 v{self.V_TR+3}, 49152, v{self.V_TR+1}')
        if self.grp == 1:
            I(p, f"""v_and_b32 v4, 7, v1
                     v_lshlrev_b32 v4, 4, v4
                     v_add_u32 v4, {(self.NT-1)*2048 + 15*128}, v4
                     v_add_u32 v5, 65536, v4
                     v_mov_b32 v6, 0x3f803f80
                     v_mov_b32 v7, 0x3f803f80
                     v_mov_b32 v8, 0x3f803f80
                     v_mov_b32 v9, 0x3f803f80""")
            for xa in self.XS[:4]:
                I(p, f'ds_write_b128 v{4 + xa // 65536}, v[6:9] offset:{xa % 65536}', wr=[('tok_ones', 0)])
        I(p, f'v_mul_u32_u24 v4, {CH}, v3\nv_lshl_add_u32 v{V_ST}, v2, 4, v4')
        I(p, f's_mul_i32 s52, s29, {4*CH}\ns_add_u32 s46, s46, s52')
        I(p, f'v_lshlrev_b32 v{self.V_TABR}, {2 if att else 3}, v2')
        I(p, f's_lshl_b32 s52, s29, 8\ns_add_u32 s52, s52, {CSL}\nv_lshl_add_u32 v{self.V_CSA}, v3, 6, s52')
        I(p, 's_mov_b32 s62, 0x80008000\ns_mov_b32 s63, 0x80008000')
    def setup_s2(self):
        p = self.p
        ng = self.cfg.get('k2_rot', 7)
        def tab(N): return sum(((c % ng) * N // ng) << (4 * c) for c in range(7))
        cnt = self.cfg.get('host', [29] * 7 + [28]); assert sum(cnt) == 231
        cum = [sum(cnt[:i]) for i in range(8)]
        pk = lambda v: sum(x << (8 * i) for i, x in enumerate(v))
        G(p, f"""s_mov_b32 s66, {pk(cum[:4])}
                 s_mov_b32 s67, {pk(cnt[:4])}
                 s_cmp_ge_u32 s56, 4
                 s_cselect_b32 s66, {pk(cum[4:])}, s66
                 s_cselect_b32 s67, {pk(cnt[4:])}, s67
                 s_lshl_b32 s47, s56, 3
                 s_lshr_b32 s66, s66, s47
                 s_lshr_b32 s67, s67, s47
                 s_and_b32 s47, s66, 255
                 s_and_b32 s77, s67, 255
                 s_add_u32 s47, s47, s57
                 s_mul_i32 s66, s47, 9363
                 s_lshr_b32 s66, s66, 16
                 s_mul_i32 s67, s66, 7
                 s_sub_u32 s67, s47, s67
                 s_cmp_ge_u32 s30, 6
                 s_cselect_b32 s68, s4, s8
                 s_cselect_b32 s69, s5, s9
                 s_cselect_b32 s70, s6, s10
                 s_cselect_b32 s75, 28, 32
                 s_cselect_b32 s73, 16, 19
                 s_cselect_b32 s74, 0, s32
                 s_mov_b32 s42, {tab(18)}
                 s_cselect_b32 s42, {tab(16)}, s42
                 s_cmp_ge_u32 s57, s77
                 s_cselect_b32 s70, 0, s70
                 s_mov_b32 s71, 0x20000
                 s_mul_i32 s75, s75, 896
                 s_mul_i32 s74, s74, {19*28672}
                 s_mul_i32 s73, s73, s75
                 s_add_u32 s73, s73, s74
                 s_lshl_b32 s72, s67, 2
                 s_lshr_b32 s42, s42, s72
                 s_and_b32 s42, s42, 15
                 s_mul_i32 s72, s42, s75
                 s_add_u32 s72, s72, s74
                 s_lshl_b32 s76, s30, 11""")
        I(p, """v_lshlrev_b32 v4, 1, v3
                v_and_b32 v5, 7, v1
                v_xor_b32 v4, v4, v5
                v_lshrrev_b32 v5, 3, v1
                v_mul_u32_u24 v6, 896, v5
                v_lshl_add_u32 v6, v4, 4, v6
                s_mul_i32 s47, s31, 14336
                s_lshl_b32 s52, s67, 7
                s_add_u32 s47, s47, s52
                v_add_u32 v11, s47, v6""")
        tr_setup(p, 4, RA, 6)
    def nonce(self, V):
        self.p.add(f'v_mov_b32 v{V}, 0', 'valu', [], [('v', V)])
        self.p.add(f'global_load_dwordx2 {vr(V,2)}, v{V}, s[60:61] sc1', 'vml', [('v', V), ('tok_ep', 0)] + R('s', 60, 2), R('v', V, 2), early=self.lastbar, dead=self.lastbar + 2)
    def st_load(self):
        p = self.p
        I(p, """s_lshl_b32 s37, s2, 3
                s_add_u32 s37, s37, s30
                s_mul_i32 s58, s37, 896
                v_lshl_add_u32 v52, v1, 4, s58
                v_cmp_gt_u32 vcc, 56, v1
                v_cndmask_b32 v52, -16, v52, vcc""", dead=-930)
        I(p, 'buffer_load_dwordx4 v[48:51], v52, s[12:15], 0 offen', rd=[('tok_ep', 0), ('m0', 0)], dead=-929)
    def st_compute(self):
        p = self.p; at = self.lastbar
        dots = 'v_mov_b32 v52, 0\n  v_mov_b32 v53, 0\n  s_mov_b32 s58, 0x3f803f80\n  ' + '\n  '.join(
            [f'v_dot2c_f32_bf16 v52, s58, v{48+i}\n  v_dot2c_f32_bf16 v53, v{48+i}, v{48+i}' for i in range(4)]) + '\n  s_nop 2'
        p.add(dots, 'pk', R('v', 48, 4), R('v', 52, 2) + [('s', 58)], early=at + 1, dead=at + 2)
        I(p, f"""v_permlane32_swap_b32 v52, v53
                 v_add_f32 v52, v52, v53
                 v_mov_b32 v53, v52
                 v_permlane16_swap_b32 v52, v53
                 v_add_f32 v52, v52, v53
                 v_add_f32_dpp v52, v52, v52 row_ror:8 row_mask:0xf bank_mask:0xf
                 v_add_f32_dpp v52, v52, v52 row_ror:4 row_mask:0xf bank_mask:0xf
                 v_add_f32_dpp v52, v52, v52 row_ror:2 row_mask:0xf bank_mask:0xf
                 v_add_f32_dpp v52, v52, v52 row_ror:1 row_mask:0xf bank_mask:0xf
                 v_mov_b32 v53, v52
                 v_permlane32_swap_b32 v52, v53
                 v_mul_f32 v52, {f32(1/448)}, v52
                 v_mul_f32 v54, v52, v52
                 v_mul_f32 v53, {f32(1/448)}, v53
                 v_sub_f32 v53, v53, v54
                 v_max_f32 v53, 0, v53
                 v_cvt_pk_bf16_f32 v54, -v52, v53
                 v_lshlrev_b32 v48, 16, v54
                 v_and_b32 v53, 0xffff0000, v54
                 v_add_f32 v53, {f32(1e-5)}, v53
                 v_cvt_pk_bf16_f32 v53, v53, v53
                 v_and_b32 v53, 0xffff0000, v53
                 v_sqrt_f32 v53, v53
                 v_cvt_pk_bf16_f32 v53, v53, v53
                 v_and_b32 v53, 0xffff0000, v53
                 v_rcp_f32 v50, v53
                 s_lshl_b32 s37, s37, 4
                 s_add_u32 s37, s37, {STO}
                 v_mov_b32 v55, s37
                 v_cmp_eq_u32 vcc, 0, v1
                 v_cndmask_b32 v55, -16, v55, vcc""")
    def st_publish(self):
        p = self.p; at = self.lastbar; tag = f's{int(self.att)}{self.grp}'
        p.add(nonce_check(tag, 58, 54), 'rfl', R('v', 58, 2) + R('s', 60, 2), R('v', 58, 2) + [('v', 54), ('vcc', 0), ('s', 65)], early=at + 1, dead=at + 2)
        I(p, 'v_mov_b32 v49, v58\nv_mov_b32 v51, v59')
        I(p, 'buffer_store_dwordx4 v[48:51], v55, s[24:27], 0 offen sc1', rd=[('tok_ep', 0), ('m0', 0)], early=at + 2, dead=at + 3)
    def st_fetch(self):
        p = self.p; at = self.lastbar
        I(p, f"""s_lshl_b32 s58, s29, 6
                 v_add_u32 v52, s58, v1
                 v_min_u32 v52, {126 if self.att else 190}, v52
                 v_lshlrev_b32 v{self.V_TABW}, {2 if self.att else 3}, v52
                 v_add_u32 v52, s33, v52
                 v_max_i32 v52, 0, v52
                 v_min_u32 v52, 2047, v52
                 v_lshlrev_b32 v52, 4, v52
                 v_add_u32 v52, {STO}, v52""")
        I(p, 'buffer_load_dwordx4 v[48:51], v52, s[24:27], 0 offen sc1', rd=[('tok_ep', 0), ('m0', 0)], early=at + 1, dead=at + 2)
    def st_table(self, VN):
        p = self.p; at = self.lastbar; tag = f't{int(self.att)}'
        p.add(f"""s_mov_b32 s65, 0
L_q{tag}:
  v_cmp_ne_u32 vcc, v49, v58
  v_cmp_ne_u32 s[48:49], v51, v59
  s_add_u32 s65, s65, 1
  s_cmp_ge_u32 s65, 0x40000
  s_cbranch_scc1 L_r{tag}
  s_nop 1
  s_or_b64 vcc, vcc, s[48:49]
  s_cbranch_scc0 L_r{tag}
  s_sleep 4
  buffer_load_dwordx4 v[48:51], v52, s[24:27], 0 offen sc1
  s_waitcnt vmcnt(0)
  s_branch L_q{tag}
L_r{tag}:""", 'rfl', R('v', 48, 5) + R('v', 58, 2), R('v', 48, 4) + [('vcc', 0), ('s', 65), ('s', 48), ('s', 49)], early=at + 1, dead=at + 2)
        if self.att:
            I(p, f'ds_write_b32 v{self.V_TABW}, v48', wr=[('tok_tw', 0)], dead=at + 4)
            I(p, f'ds_write_b32 v{self.V_TABW}, v50 offset:1024', wr=[('tok_tw', 0)], dead=at + 5)
        else:
            I(p, 'v_mul_f32 v49, v50, v50')
            I(p, f'ds_write_b64 v{self.V_TABW}, v[48:49]', wr=[('tok_tw', 0)], dead=at + 4)
        I(p, f'v_mov_b32 v{VN}, v58\nv_mov_b32 v{VN+1}, v59')
    def st_hooks(self, ks, VN):
        c = self.cfg
        if ks == c.get('st_c', 2): self.st_compute()
        if ks == c.get('st_n', 3): self.nonce(58)
        if ks == c.get('st_p', 5): self.st_publish()
        if self.grp:
            if ks == c.get('st_f', 9): self.st_fetch()
            if ks == c.get('st_t', 11): self.st_table(VN)
    def early_b(self, n, at):
        bdma(self.p, n, rd=[('tok_ep', 0)], early=at, dead=at + 1)
    def early_read(self, n):
        for ct in range(4):
            for e in range(2):
                I(self.p, f'ds_read_b64_tr_b16 {fr(n, 4*ct+2*e, 2)}, v{4+ct} offset:{e*2048}', rd=[('tok_ep', 0)], wr=[('tok_er', n)])
        self.pending_free.append((('tok_er', n), ('tok_ef', n)))
    def eb_hooks(self, ks, plan):
        if ks in (9, 12): self.early_read(0 if ks == 9 else 1)
        for q, n in enumerate({7: [0], 10: [1]}.get(ks, []) + plan.get(ks, [])):
            self.early_b(n, self.lastbar + 2 + 5 * q)
        if ks in (8, 11): self.pending_free.append((('tok_bd', 0 if ks == 8 else 1), ('tok_el', ks)))
    def pf_code(self):
        if not self.cfg.get('pfi', 1): return
        tag = f'{int(self.att)}{self.grp}'
        KN = NAME + '_kernel'
        self.p.add(f"""s_getpc_b64 s[58:59]
L_pc{tag}:
  s_sub_u32 s58, s58, L_pc{tag}-{KN}
  s_subb_u32 s59, s59, 0
  s_lshl_b32 s47, s57, 3
  s_add_u32 s47, s47, s30
  s_lshl_b32 s47, s47, 8
  v_and_b32 v4, 1, v1
  v_lshl_add_u32 v4, v4, 7, s47
  v_min_u32 v4, L_end-{KN}, v4
  v_mov_b32 v5, s59
  v_add_co_u32 v4, vcc, s58, v4
  s_nop 1
  v_addc_co_u32 v5, vcc, 0, v5, vcc
  global_load_dword v35, v[4:5], off""", 'vml', [('v', 1), ('s', 30), ('tok_ep', 0), ('m0', 0)], [('s', 58), ('s', 59), ('s', 47), ('vcc', 0)], dead=-950, lat=4)
        self.p.add('s_nop 0', 'salu', [('s', 58)], [('v', 4), ('v', 5)], dead=-949)
    def pf_tlb(self):
        if not self.cfg.get('tlb', 0): return
        p, V = self.p, self.V_PF
        I(p, f"""s_mov_b32 s27, 0x20000
                 s_mov_b32 s26, {WS_BYTES}
                 s_lshl_b32 s58, s57, 3
                 s_add_u32 s58, s58, s30
                 s_mul_i32 s59, s58, {(WS_BYTES // 255) & ~127}
                 s_min_u32 s59, s59, {WS_BYTES - 128}
                 v_mov_b32 v{V}, s59
                 s_mul_i32 s59, s58, 7168
                 v_mov_b32 v{V+1}, s59""")
        self.touch(V, 's[24:27]', dead=-940)
        p.add(f'global_load_dword v35, v{V+1}, s[72:73]', 'vml', [('v', V + 1), ('tok_ep', 0), ('m0', 0)] + R('s', 72, 2), [], dead=-939)
    def pf_setup(self):
        I(self.p, 's_mov_b32 s10, 1605632\ns_mov_b32 s11, 0x20000\ns_mov_b32 s6, 401408\ns_mov_b32 s7, 0x20000')
        if not self.att:
            I(self.p, 's_lshl_b32 s59, s2, 2\ns_add_u32 s59, s59, s29\ns_mov_b32 s98, 1204224\ns_mov_b32 s99, 0x20000' .replace('s98', 's70').replace('s99', 's71'))
    def lin(self, V, srd, base, nbytes, nw, idx, **kw):
        ST = self.cfg.get('pfst', 128); sh = ST.bit_length() - 1
        c = -(-nbytes // (ST * nw))
        assert c <= 64
        I(self.p, f's_mul_i32 s58, s{idx}, {c*ST}\ns_add_u32 s58, s58, {base}\nv_min_u32 v{V}, {c-1}, v1\nv_lshl_add_u32 v{V}, v{V}, {sh}, s58')
        self.touch(V, srd, **kw)
    def pf_phase(self, a, b, **kw):
        p, V, n = self.p, self.V_PF, b - a
        if self.att or not self.cfg.get('pf1', 1): return
        if self.cfg.get('pfw', 0): self.lin(V, 's[20:23]' if self.grp else 's[16:19]', a * 229376, n * 229376, 672, 59, **kw)
        if self.grp == 0: self.lin(V + 1, 's[68:71]', a * 172032, n * 172032, 672, 59, **kw)
        elif self.cfg.get('pfx', 1) == 0: pass
        elif self.cfg.get('xlin', 0):
            if not getattr(self, 'xdone', False): self.lin(V + 1, 's[12:15]', 0, 1835008, 672, 59, **kw); self.xdone = True
        else:
            I(p, f"""s_mul_i32 s58, s59, {4*896}
                     s_add_u32 s58, s58, {a*128}
                     v_min_u32 v{V+1}, {n-1}, v2
                     v_lshlrev_b32 v{V+1}, 7, v{V+1}
                     v_mad_u32_u24 v{V+1}, v3, s3, v{V+1}
                     v_add_u32 v{V+1}, s58, v{V+1}""")
            self.touch(V + 1, 's[12:15]', **kw)
    def pf_w2(self, **kw):
        V = self.V_PF
        if self.att or not self.cfg.get('pf1', 1): return
        self.lin(V, 's[8:11]', 802816 * self.grp, 802816, 672, 59, **kw)
        if self.grp == 0: self.lin(V + 1, 's[4:7]', 0, 401408, 672, 59, **kw)
    def touch(self, V, srd, off=0, **kw):
        k, r, w, c = auto(f'buffer_load_dword v35, v{V}, {srd}, 0 offen')
        self.p.add(f'buffer_load_dword v35, v{V}, {srd}, 0 offen offset:{off}', 'vml', r + [('tok_ep', 0), ('m0', 0)], [], **kw)
    def prefetch_k2(self, piece):
        p, V = self.p, self.V_PF
        if not self.cfg.get('pf2', 1) or self.att: return
        if piece == 0:
            I(p, f"""s_lshl_b32 s59, s57, 3
                     s_add_u32 s59, s59, s30
                     s_mul_i32 s58, s59, {75*128}
                     s_mul_i32 s59, s59, {19*128}
                     v_min_u32 v{V}, 14, v1
                     v_lshl_add_u32 v{V}, v{V}, 7, s58
                     v_min_u32 v{V+1}, 18, v1
                     v_lshl_add_u32 v{V+1}, v{V+1}, 7, s59""")
        kw = dict(early=self.lastbar + 2, dead=self.lastbar + 4)
        if piece in (2, 4): I(p, f'v_add_u32 v{V}, 3840, v{V}')
        if piece < 5: self.touch(V, 's[8:11]', 1920 * (piece % 2), **kw)
        else: self.touch(V + 1, 's[4:7]', **kw)
    def q_w(self, ks, m):
        self.wmap[(ks, m)] = self.nimg
        self.dmaq.append(('w', ks, m, self.nimg)); self.nimg += 1
    def pump(self, limit=99, at=None, sp=4):
        p = self.p; k = 0
        if at is None: at = max(self.lastbar, 0) + 1 + (sp / 2.0) * self.grp
        while self.dmaq and k < limit:
            d = self.dmaq[0]
            kw = dict(early=at + sp * k, dead=at + sp * k + 1)
            if d[0] == 'x':
                _, j, n = d
                rd = []
                if j in self.XPREV:
                    tok = ('tok_xfree', self.XPREV[j])
                    if tok not in self.have: return
                    rd = [tok]
                I(p, f's_add_u32 m0, s41, {self.XS[j] + 8192*n - (0 if self.rot else 128*j)}')
                if n == self.NU - 1 and (self.grp == 1 or j == 0):
                    kw.update(pre=[mk('s_mov_b64 exec, s[44:45]')], post=[mk('s_mov_b64 exec, -1')], maybe=True)
                    rd = rd + R('s', 44, 2)
                I(p, f'buffer_load_dwordx4 v{self.V_OFFX}, s[12:15], s{34+n} offen offset:{0 if self.rot else 128*j} lds', rd=rd + [('tok_ep', 0)], wr=[('tok_xd', j, n)], **kw)
            else:
                _, ks, m, u = d
                rd = []
                if u >= self.NI:
                    tok = ('tok_wfree', u - self.NI)
                    if tok not in self.have: return
                    rd = [tok]
                off = 896 * m if self.att else 0
                srd = 's[16:19]' if (self.att or m == 0) else 's[20:23]'
                if ks % 2 == 0 and m == 0:
                    if not self.rot: I(p, f's_mov_b32 s64, {(ks//2)*64*self.pitch}')
                    elif ks == 0:
                        I(p, f's_mul_i32 s64, s28, {64*self.pitch}')
                    else:
                        G(p, f's_add_u32 s28, s28, 1\ns_cmp_eq_u32 s28, 7\ns_cselect_b32 s28, 0, s28\ns_mov_b32 s100, 128\ns_cselect_b32 s100, -768, s100\ns_mul_i32 s64, s28, {64*self.pitch}')
                        for n in range(self.NU): I(p, f's_add_u32 s{34+n}, s{34+n}, s100')
                I(p, f's_add_u32 m0, s41, {self.waddr(u) - off}')
                I(p, f'buffer_load_dwordx4 v{self.V_OFFW + (ks&1)}, {srd}, s64 offen offset:{off} lds', rd=rd + [('tok_ep', 0)], wr=[('tok_wd', u)], **kw)
            self.dmaq.pop(0); k += 1
    def barrier(self, xs=(), ws=(), rd=(), wr=(), look=8):
        rd, wr = list(rd), [('tok_bar', 0), ('tok_ep', 0)] + list(wr)
        for j in xs:
            rd += [('tok_xd', j, n) for n in range(self.NU)]; wr.append(('tok_xr', j))
        for (ks, m) in ws:
            u = self.wmap[(ks, m)]
            rd.append(('tok_wd', u)); wr.append(('tok_wr', u))
        for (a, b) in self.pending_free:
            rd.append(a); wr.append(b); self.have.add(b)
        self.pending_free = []
        self.lastbar = self.p.nm - look
        self.p.add('s_barrier', 'bar', rd, wr, early=self.p.nm - look, dead=self.p.nm - look + 2)
    def epoch(self, ks, look, xfree=None):
        cfg = self.cfg
        if xfree is not None:
            for j in xfree: self.pending_free.append((('tok_xrd', j), ('tok_xfree', j)))
        self.barrier(xs=[ks // 2] if ks % 2 == 0 else [], ws=[(ks, m) for m in range(self.NM)],
                     rd=[('tok_ones', 0)] if (ks == 0 and self.grp) else [], look=look)
        if xfree is None and ks % 2 == 0 and 2 <= ks: self.pending_free.append((('tok_xrd', ks // 2 - 1), ('tok_xfree', ks // 2 - 1)))
        lb = max(self.lastbar, 0)
        for (e, a, b) in cfg.get('pfs', [(-1, 1, 2), (0, 2, 4), (2, 4, 7)]):
            if e == ks: self.pf_phase(a, b, early=lb, dead=lb + 1)
        if ks == cfg.get('pfC', 4): self.pf_w2(early=lb, dead=lb + 1)
        if ks == 6: self.setup_s2()
        if 0 <= ks - cfg.get('pf2_at', 4) < 6: self.prefetch_k2(ks - cfg.get('pf2_at', 4))
        lims = cfg.get('lims', [(5, 1), (9, 2), (7, 3)])
        lim, sp = lims[ks] if ks < len(lims) else (6, 3.5)
        self.pump(limit=lim, sp=sp)
    def wfrag(self, ks, m, base):
        u = self.wmap[(ks, m)]; off = self.waddr(u) - self.WB
        win = 1 if off >= 49152 else 0
        for s in range(2):
            for e in range(2):
                I(self.p, f'ds_read_b64_tr_b16 {ar(base+4*s+2*e,2)}, v{self.V_TR+2*win+s} offset:{off - 49152*win + e*1024}',
                  rd=[('tok_wr', u)], wr=[('tok_wrd', u)])
        self.pending_free.append((('tok_wrd', u), ('tok_wfree', u)))
    def xfrag(self, t, ks, stat=None):
        j, e = ks >> 1, ks & 1
        r = self.XR[self.xring % len(self.XR)]; self.xring += 1
        off = self.XS[j] + (t - self.t0) * 2048
        a = (self.V_XH if off >= 65536 else self.V_XB) + e; off %= 65536
        I(self.p, f'ds_read_b128 {r}, v{a} offset:{off}', rd=[('tok_xr', j)], wr=[('tok_xrd', j)])
        return r
    def masked(self, text, sreg, **kw):
        I(self.p, text, rd=R('s', sreg, 2) + list(kw.pop('rd', [])), pre=[mk(f's_mov_b64 exec, s[{sreg}:{sreg+1}]')], post=[mk('s_mov_b64 exec, -1')], **kw)

def gen_ffn(cfg, grp):
    k = S1(False, grp, cfg); p = k.p
    ACC, SACC, CS, TMP = 64, 36, 48, 164
    k.XR = [vr(r, 4) for r in ([36, 40, 44, 164, 168, 172] if grp == 0 else [144, 148, 152, 156, 168, 172])]
    STR = [160, 162, 24, 28, 30, 4]
    tiles = list(range(6)) if grp == 0 else [10, 6, 7, 8, 9]
    KT = cfg['KT']; LK = cfg.get('LK', 18)
    k.head()
    k.pf_code(); k.pf_tlb()
    if cfg.get('hs', 1): k.st_load()
    k.pf_setup()
    I(p, 's_mov_b32 s3, 896')
    for (e, a, b) in cfg.get('pfs', [(-1, 1, 2), (0, 2, 4), (2, 4, 7)]):
        if e == -1: k.pf_phase(a, b, dead=-900)
    if cfg.get('pfC', 4) == -1: k.pf_w2(dead=-890)
    k.pump(limit=cfg.get('first', 2), at=-800)
    k.setup_b(23)
    def ab(t): return ACC + 16 * (t - 6 * grp)
    def wf(ks): return 16 * (ks % 3)
    def tile_mfma(t, ks):
        f = k.xfrag(t, ks)
        for s in range(4):
            d = vr(ab(t) + 4 * s, 4)
            mf(p, d, ar(wf(ks) + 4 * s, 4), f, d if ks else '0')
    per = 24 if grp == 0 else (20 if cfg.get('hs', 1) else 23)
    posu = [min(ks - min(LK, cfg.get('lk0', 99) + cfg.get('lk1', 3) * ks) / 24.0, KT - cfg.get('csearly', 0) - (cfg.get('lkend', 10) + (13 - ks) * cfg.get('ramp', 17)) / 24.0) for ks in range(14)]
    xfreed = set()
    def xf(pu):
        r = [j for j in range(6) if 2 * j + 2 <= pu and j not in xfreed]
        xfreed.update(r); return r
    assert KT == 12
    ce = cfg.get('csearly', 0)
    KE = KT - ce
    for ks in range(14):
        k.epoch(ks, p.nm - posu[ks] * per, xfree=xf(posu[ks]))
        k.st_hooks(ks, 164)
        if ks == 7: assert 2 in xfreed
        if ks == 11: assert 4 in xfreed
        k.eb_hooks(ks, {11: [2, 3], 12: [4], 13: [5, 6]})
        for m in range(2): k.wfrag(ks, m, wf(ks) + 8 * m)
        if ks < KE:
            for t in tiles: tile_mfma(t, ks)
    assert not k.dmaq
    def epi(t, n, pk):
        a = ab(t); st = STR[n]
        if pk:
            for i in range(0, 16, 2): I(p, f'v_pk_fma_f32 {vr(a+i,2)}, {vr(CS+i,2)}, {vr(st,2)}, {vr(a+i,2)} op_sel_hi:[1,0,1]')
            for i in range(0, 8, 2): I(p, f'v_pk_mul_f32 {vr(a+i,2)}, {vr(a+i,2)}, {vr(a+8+i,2)}')
            for i in range(0, 8, 2): I(p, f'v_pk_mul_f32 {vr(a+i,2)}, {vr(a+i,2)}, {vr(st,2)} op_sel:[0,1]')
        else:
            for i in range(16): I(p, f'v_fmac_f32 v{a+i}, v{CS+i}, v{st}')
            for i in range(8): I(p, f'v_mul_f32 v{a+i}, v{a+i}, v{a+8+i}')
            for i in range(8): I(p, f'v_mul_f32 v{a+i}, v{a+i}, v{st+1}')
        for i in range(4): I(p, f'v_cvt_pk_bf16_f32 v{a+8+i}, v{a+2*i}, v{a+2*i+1}')
        I(p, f'buffer_store_dwordx4 {vr(a+8,4)}, v{k.V_ST}, s[24:27], s46 offen offset:{256*t} {cfg["st_flags"]}', wr=[('tok_vq', 0)])
    nb = cfg.get('tab_after', 1)
    for j in xf(99): k.pending_free.append((('tok_xrd', j), ('tok_xfree', j)))
    def tab_reads():
        for q in range(4):
            I(p, f'ds_read_b128 {vr(CS+4*q,4)}, v{k.V_CSA} offset:{16*q}', rd=[('tok_tab', 0)], wr=[('tok_lr', 0)], dead=k.lastbar + 2)
        for q, tt in enumerate(tiles):
            I(p, f'ds_read_b64 {vr(STR[q],2)}, v{k.V_TABR} offset:{128*tt}', rd=[('tok_tab', 0)], wr=[('tok_lr', 0)], dead=k.lastbar + 3 + q)
        for q, n in enumerate(range(7, cfg['ne'])): k.early_b(n, k.lastbar + 1 + 4 * q)
    seq = [(t, ks) for ks in range(KE, KT) for t in tiles if t != 10] + [(t, ks) for t in tiles if t != 10 for ks in range(KT, 14)]
    if grp:
        for ks in range(KE, 14): tile_mfma(10, ks)
        for q in range(4):
            k.masked(f'ds_write_b128 v{k.V_CSA}, {vr(ab(10)+4*q,4)} offset:{16*q}', 62, wr=[('tok_tw', 0)], dead=p.nm + 3)
        k.barrier(rd=[('tok_tw', 0)], wr=[('tok_tab', 0)], look=-4)
        tab_reads()
    nbm = ((4 if cfg.get('hs', 1) else 7) * (14 - KE) + 4 + 3) // 4 + cfg.get('nbx', 0)
    for n, (t, ks) in enumerate(seq):
        if (not grp) and n == nbm:
            k.barrier(wr=[('tok_tab', 0)], look=0); tab_reads()
        tile_mfma(t, ks)
    npk = cfg.get('npk', 2)
    for n, t in enumerate(tiles): epi(t, n, n >= len(tiles) - npk)
    k.barrier(wr=[('tok_vq', 0)], rd=[('tok_xrd', 6), ('tok_xrd', 5), ('tok_lr', 0)] + [('tok_bd', n) for n in range(cfg['ne'])], look=0)
    if grp: I(p, 'v_mov_b32 v28, v164\nv_mov_b32 v29, v165', rd=[('tok_ep', 0)])
    return k

def gen_att(cfg, grp):
    k = S1(True, grp, cfg); p = k.p
    ACC, SACC, CSQ, CSV, BIAS, MSK, KADR = 64, 36, 48, 46, 160, 172, 25
    V_ST, V_EX, V_NM4, V_CV = 44, 45, 23, 24
    k.XR = [vr(r, 4) for r in ([36, 40, 80, 84, 60] if grp == 0 else [36, 40, 136, 140, 144, 148])]
    tiles = [3, 0, 1, 2] if grp == 0 else [6, 5, 4]
    qt = [1, 2, 3] if grp == 0 else [6, 5, 4]
    tb = 0 if grp == 0 else 4
    def ka(t, s=0): return (ACC + 24 * (t - tb) + 4 * s) if t >= tb else 152
    def va(t, s=0): return ACC + 24 * (t - tb) + 8 + 4 * s
    def qa(t, s=0): return ACC + 24 * (t - tb) + 16 + 4 * s
    VPK = [qa(0), 36] if grp == 0 else [136, 144]
    def vp(s, t): return VPK[s] + 2 * (t - (0 if grp == 0 else 3))
    def wf(ks, m): return 24 * (ks % 2) + 8 * m
    LK = cfg.get('LKA', 16)
    k.head()
    k.pf_code(); k.pf_tlb()
    if cfg.get('hs', 1): k.st_load()
    k.pf_setup()
    I(p, 's_mov_b32 s3, 896')
    for (e, a, b) in cfg.get('pfs', [(-1, 1, 2), (0, 2, 4), (2, 4, 7)]):
        if e == -1: k.pf_phase(a, b, dead=-900)
    if cfg.get('pfC', 4) == -1: k.pf_w2(dead=-890)
    k.pump(limit=cfg.get('first_a', 3), at=-800)
    k.setup_b(V_ST)
    I(p, 'v_lshlrev_b32 v4, 2, v3\nv_sub_u32 v4, v2, v4\nv_mov_b32 v5, 0xff800000')
    for r in range(4):
        I(p, f"""v_subrev_u32 v6, {r}, v4
                 v_and_b32 v7, 0x80000001, v6
                 v_cmp_eq_u32 vcc, 0, v7
                 v_cndmask_b32 v{BIAS+r}, v5, 0, vcc
                 v_cmp_eq_u32 vcc, 0x80000000, v7
                 v_cndmask_b32 v{BIAS+4+r}, v5, 0, vcc""")
        if grp == 0: I(p, f'v_cndmask_b32 v{BIAS+8+r}, v{BIAS+4+r}, v5, s[54:55]')
    I(p, """v_and_b32 v6, 1, v2
            v_cmp_eq_u32 vcc, 1, v6
            v_mov_b32 v7, 0xffff
            v_mov_b32 v8, 0xffff0000
            v_cndmask_b32 v7, v7, v8, vcc
            v_lshl_add_u32 v6, v3, 2, v6""")
    for b in range(2):
        I(p, f"""v_add_u32 v8, {2*b}, v6
                 v_cmp_gt_u32 vcc, v8, v2
                 v_cndmask_b32 v{MSK+b}, 0, v7, vcc
                 v_cndmask_b32 v{MSK+2+b}, v7, 0, vcc
                 v_subrev_u32 v9, 16, v8
                 v_cndmask_b32 v8, v8, v9, vcc
                 v_lshlrev_b32 v8, 2, v8
                 v_add_u32 v{KADR+b}, 1024, v8""")
    I(p, f"""v_lshlrev_b32 v{V_NM4}, 4, v3
             s_lshl_b32 s52, s29, 7
             s_add_u32 s52, s52, {CVL}
             v_lshl_add_u32 v{V_CV}, v2, 3, s52
             s_lshl_b32 s52, s29, 11
             s_add_u32 s52, s52, {LA + 14336}
             v_lshl_add_u32 v{V_EX}, v1, 4, s52
             s_mov_b32 s38, 0
             s_mov_b32 s39, 0xffff0000""")
    def m_kq(t, ks, f):
        for s in range(2):
            d = vr(ka(t, s), 4); mf(p, d, ar(wf(ks, 1) + 4 * s, 4), f, d if ks else '0')
        if t:
            for s in range(2):
                d = vr(qa(t, s), 4); mf(p, d, ar(wf(ks, 0) + 4 * s, 4), f, d if ks else '0')
    def m_v(t, ks, f):
        for s in range(2):
            d = vr(va(t, s), 4); mf(p, d, f, ar(wf(ks, 2) + 4 * s, 4), d if ks else '0')
    for ks in range(14):
        k.epoch(ks, min(LK, cfg.get('lk0', 99) + cfg.get('lk1', 3) * ks))
        k.st_hooks(ks, 168)
        nl = cfg.get('att_loop', 4)
        k.eb_hooks(ks, {e: [n for n in v if n < nl] for e, v in {11: [2], 12: [3, 4], 13: [5, 6, 7]}.items()})
        for m in (1, 0, 2): k.wfrag(ks, m, wf(ks, m))
        fs = {}
        for n, t in enumerate(tiles):
            fs[t] = k.xfrag(t, ks)
            m_kq(t, ks, fs[t])
            if ks < 13 or n == 0: m_v(t, ks, fs[t])
            if ks == 13 and n == 0 and grp:
                for q, r in enumerate((qa(6), qa(6, 1), ka(6), ka(6, 1))):
                    k.masked(f'ds_write_b128 v{k.V_CSA}, {vr(r,4)} offset:{16*q}', 62, wr=[('tok_tw', 0)], dead=p.nm + 3)
                for s in range(2):
                    k.masked(f'ds_write_b32 v{V_CV}, v{va(6,s)+3} offset:{4*s}', 38, wr=[('tok_tw', 0)], dead=p.nm + 4)
        if ks == 13:
            k.barrier(rd=([('tok_tw', 0)] if grp else []) + [('tok_xrd', 6), ('tok_xrd', 5)], wr=[('tok_tab', 0)], look=2 if grp else 4)
            for t in tiles[1:]: m_v(t, ks, fs[t])
    assert not k.dmaq
    for q in range(4): I(p, f'ds_read_b128 {vr(CSQ+4*q,4)}, v{k.V_CSA} offset:{16*q}', rd=[('tok_tab', 0)], wr=[('tok_lr', 0)], dead=k.lastbar + 1)
    I(p, f'ds_read_b64 {vr(CSV,2)}, v{V_CV}', rd=[('tok_tab', 0)], wr=[('tok_lr', 0)], dead=k.lastbar + 1)
    NMR = [4, 5, 6, 7]; NM4 = [16, 28, 32, 16]
    ebq = []
    def eb1():
        if ebq:
            n = ebq.pop(0); bdma(p, n, rd=[('tok_tab', 0)])
    def fix(base, cs, nm):
        for i in range(0, 8, 2): I(p, f'v_pk_fma_f32 {vr(base+i,2)}, {vr(cs+i,2)}, {vr(nm & ~1,2)}, {vr(base+i,2)} ' + ('op_sel:[0,1,0]' if nm & 1 else 'op_sel_hi:[1,0,1]'))
        for i in range(4): I(p, f'v_cvt_pk_bf16_f32 v{base+i}, v{base+2*i}, v{base+2*i+1}')
    def fix_v(t, n):
        nm = NM4[n]
        for s in range(2):
            a = va(t, s)
            for i in (0, 2): I(p, f'v_pk_fma_f32 {vr(a+i,2)}, {vr(nm+i,2)}, {vr(CSV,2)}, {vr(a+i,2)} ' + ('op_sel:[0,1,0]' if s else 'op_sel_hi:[1,0,1]'))
            for i in range(2): I(p, f'v_cvt_pk_bf16_f32 v{vp(s,t)+i}, v{a+2*i}, v{a+2*i+1}')
    for n, t in enumerate(tiles):
        I(p, f'ds_read_b32 v{NMR[n]}, v{k.V_TABR} offset:{64*t}', rd=[('tok_tab', 0)], wr=[('tok_lr', 0)], dead=k.lastbar + 1)
    def rd_nm4(n): I(p, f'ds_read_b128 {vr(NM4[n],4)}, v{V_NM4} offset:{64*tiles[n]}', rd=[('tok_tab', 0)], wr=[('tok_lr', 0)], dead=k.lastbar + 2)
    rd_nm4(0); rd_nm4(1)
    p.tail_fixed = len(p.ops)
    for n, t in enumerate(tiles):
        fix(ka(t), CSQ + 8, NMR[n])
        if n == 0:
            fix_v(t, 0)
            if grp == 0:
                I(p, f'ds_write_b128 v{V_EX}, {vr(ka(3),4)}', rd=[('tok_tab', 0)], wr=[('tok_ex', 0)])
                for s in range(2): I(p, f'ds_write_b64 v{V_EX}, {vr(vp(s,3),2)} offset:{1024 + 8*s}', rd=[('tok_tab', 0)], wr=[('tok_ex', 0)])
        if t: fix(qa(t), CSQ, NMR[n])
        eb1()
    k.barrier(rd=[('tok_ex', 0)] if grp == 0 else R('v', qa(4), 4), wr=[('tok_exr', 0)], look=0)
    if grp:
        I(p, f'ds_read_b128 {vr(ka(3),4)}, v{V_EX}', rd=[('tok_exr', 0)], wr=[('tok_lr', 0)])
        for s in range(2): I(p, f'ds_read_b64 {vr(vp(s,3),2)}, v{V_EX} offset:{1024 + 8*s}', rd=[('tok_exr', 0)], wr=[('tok_lr', 0)])
    for n, t in enumerate(qt):
        T = CSQ + 5 * n
        I(p, f'ds_read_b32 v{T}, v{k.V_TABR} offset:{1024+64*t}', rd=[('tok_tab', 0)], wr=[('tok_lr', 0)])
        for b in range(2): I(p, f'ds_read_b32 v{T+1+b}, v{KADR+b} offset:{64*t}', rd=[('tok_tab', 0)], wr=[('tok_lr', 0)])
    for n in range(2, len(tiles)): rd_nm4(n)
    for t in qt:
        mf(p, vr(qa(t, 1), 4), vr(ka(t), 4), vr(qa(t), 4), vr(BIAS, 4))
        mf(p, vr(ka(t, 1), 4), vr(ka(t - 1), 4), vr(qa(t), 4), vr(BIAS + (8 if t == 1 else 4), 4))
    for n, t in enumerate(tiles[1:]): fix_v(t, n + 1); eb1()
    SC = 0.18898223650461362 * 1.4426950408889634
    def softmax(t, n):
        a, b, T = qa(t, 1), ka(t, 1), CSQ + 5 * n
        return f"""v_mul_f32 v{T}, {f32(SC)}, v{T}
                 v_mul_f32 v{T+3}, v{T}, v{T+1}
                 v_mul_f32 v{T+4}, v{T}, v{T+2}
                 v_max3_f32 v{a}, v{a}, v{a+1}, v{b}
                 v_max3_f32 v{a+2}, v{a+2}, v{a+3}, v{b+2}
                 v_max_f32 v{a}, v{a}, v{b+1}
                 v_max_f32 v{a+2}, v{a+2}, v{b+3}
                 v_mul_f32 v{a}, v{a}, v{T+3}
                 v_mul_f32 v{a+2}, v{a+2}, v{T+4}
                 v_max_f32 v{a+1}, v{a}, v{a+2}
                 v_max_f32 v{a+3}, v{a}, v{a+2}
                 v_permlane32_swap_b32 v{a+1}, v{a+3}
                 v_max_f32 v{b}, v{a+1}, v{a+3}
                 v_max_f32 v{b+1}, v{a+1}, v{a+3}
                 v_permlane16_swap_b32 v{b}, v{b+1}
                 v_max_f32 v{b}, v{b}, v{b+1}
                 v_sub_f32 v{a}, v{a}, v{b}
                 v_sub_f32 v{a+2}, v{a+2}, v{b}
                 v_exp_f32 v{a}, v{a}
                 v_exp_f32 v{a+2}, v{a+2}
                 v_add_f32 v{a+1}, v{a}, v{a+2}
                 v_add_f32 v{a+3}, v{a}, v{a+2}
                 v_permlane32_swap_b32 v{a+1}, v{a+3}
                 v_mul_f32 v{a}, v{a}, v{T+1}
                 v_mul_f32 v{a+2}, v{a+2}, v{T+2}
                 v_add_f32 v{b}, v{a+1}, v{a+3}
                 v_add_f32 v{b+1}, v{a+1}, v{a+3}
                 v_permlane16_swap_b32 v{b}, v{b+1}
                 v_add_f32 v{b}, v{b}, v{b+1}
                 v_rcp_f32 v{b}, v{b}
                 v_mul_f32 v{a}, v{a}, v{b}
                 v_mul_f32 v{a+2}, v{a+2}, v{b}
                 v_cvt_pk_bf16_f32 v{b+2}, v{a}, v{a}
                 v_cvt_pk_bf16_f32 v{b+3}, v{a+2}, v{a+2}
                 v_and_b32 v{a}, v{b+2}, v{MSK}
                 v_and_b32 v{a+1}, v{b+3}, v{MSK+1}
                 v_and_b32 v{a+2}, v{b+2}, v{MSK+2}
                 v_and_b32 v{a+3}, v{b+3}, v{MSK+3}""".split('\n')
    L = [softmax(t, n) for n, t in enumerate(qt)]
    for i in range(len(L[0])):
        for q in range(3): I(p, L[q][i])
        if i % 12 == 5: eb1()
    tail = p.ops[p.tail_fixed:]; p.ops = p.ops[:p.tail_fixed]
    m0 = len(p.ops)
    for n in range(cfg.get('att_loop', 4), cfg['ne']): bdma(p, n, rd=[('tok_tab', 0)])
    bops = p.ops[m0:]; p.ops = p.ops[:m0]
    units, cur = [], []
    for o in bops:
        cur.append(o)
        if o.kind == 'dma': units.append(cur); cur = []
    units[-1] += cur
    step = len(tail) * cfg.get('att_sp', 0.9) / len(units)
    nxt = 0.0
    for i, o in enumerate(tail):
        if units and i >= nxt:
            u = units.pop(0); p.ops += u; nxt += step
        p.ops.append(o)
    for u in units: p.ops += u
    for i, o in enumerate(p.ops): o.idx = i
    for t in qt:
        for s in range(2): mf(p, vr(va(t, s), 4), vr(vp(s, t - 1), 4), vr(qa(t, 1), 4), '0')
    for t in qt:
        a, d = va(t), qa(t)
        for i in range(4): I(p, f'v_cvt_pk_bf16_f32 v{d+i}, v{a+2*i}, v{a+2*i+1}')
        I(p, f'buffer_store_dwordx4 {vr(d,4)}, v{V_ST}, s[24:27], s46 offen offset:{256*(t-1)} {cfg["st_flags"]}', wr=[('tok_vq', 0)])
    k.barrier(wr=[('tok_vq', 0)], rd=[('tok_lr', 0)] + [('tok_bd', n) for n in range(cfg['ne'])], look=-99)
    if grp: I(p, 'v_mov_b32 v28, v168\nv_mov_b32 v29, v169')
    return k

def flag_off():
    return """v_mov_b32 v7, s101
  v_cmp_eq_u32 vcc, 0, v1
  s_nop 1
  v_cndmask_b32 v7, -16, v7, vcc"""
def nonce_check(tag, V=28, Z=6):
    return f"""s_mov_b32 s65, 0
L_pn{tag}:
  v_cmp_ne_u32 vcc, 0, v{V}
  s_add_u32 s65, s65, 1
  s_cmp_ge_u32 s65, 0x40000
  s_cbranch_scc1 L_ps{tag}
  s_nop 2
  s_cbranch_vccnz L_ps{tag}
  v_mov_b32 v{Z}, 0
  s_sleep 4
  global_load_dwordx2 v[{V}:{V+1}], v{Z}, s[60:61] sc1
  s_waitcnt vmcnt(0)
  s_branch L_pn{tag}
L_ps{tag}:"""
PUB = 'buffer_store_dwordx2 v[28:29], v7, s[24:27], 0 offen sc1'

def gen_s2(cfg, sg):
    p = Prog(vm_lat=cfg.get('s2_lat', 900), gap=cfg.get('s2_gap', 24))
    N = 16 if sg else 19
    ACC, NB, AD = 32, 10, 3
    AR = [vr(176 - 8 * AD + 4 * i, 4) for i in range(2 * AD)]
    def win(n):
        off = rowaddr(ROWSEQ[n]) - LA
        w = 0 if off < 55296 else (1 if off < 55296 + 65536 else 2)
        return w, off - (0, 55296, 120832)[w]
    def fread(n, tok, **kw):
        w, off = win(n)
        for ct in range(4):
            for e in range(2):
                I(p, f'ds_read_b64_tr_b16 {fr(n, 4*ct+2*e, 2)}, v{16+4*w+ct} offset:{off + e*2048}', rd=[tok], wr=[('tok_rd', n)], **kw)
    def bar(name, rd=(), **kw):
        p.add('s_barrier', 'bar', list(rd), [('tok_bar', 0), ('tok_b', name), ('tok_vq', 0)], **kw)
        return ('tok_b', name)
    def bd(n, rd=()): bdma(p, n, rd=rd)
    t0 = ('tok_b', 'entry')
    p.add('; (stage-1 stores outstanding)', 'vms', [], [('tok_ack', 0), ('tok_vq', 0)])
    ne = cfg['ne']
    for n in range(ne, 11): bd(n)
    tr_setup(p, 16, LA, 4)
    for w, o in ((1, 55296), (2, 120832)):
        for ct in range(4): I(p, f'v_add_u32 v{16+4*w+ct}, {o}, v{16+ct}')
    if sg: p.add('s_setprio 3', 'salu', [], [])
    if sg: p.add(flag_off(), 'valu', [('v', 1)], [('v', 7), ('vcc', 0)])
    mid = 0
    npre = cfg.get('s2_npre', 3)
    for n in range(2, 2 + mid): fread(n, t0)
    if mid:
        bm = bar('m', [('tok_rd', n) for n in range(2, 2 + mid)])
        for n in range(11, 11 + mid): bd(n, [bm])
    for n in range(2, 2 + npre): fread(n, t0)
    mark0 = len(p.ops)
    VXO, VAO, XR = 13, 144, 4
    I(p, f"""s_lshl_b32 s45, s66, 1
            s_add_u32 s45, s45, s31
            s_lshl_b32 s45, s45, 5
            s_lshl_b32 s47, s32, 5
            s_lshl_b32 s46, s67, 7
            s_add_u32 s46, s46, s47
            v_mul_u32_u24 v40, {CH}, v3
            s_mov_b32 s47, 47663
            s_mov_b32 s52, 44621""")
    for t in range(2):
        I(p, f"""v_add_u32 v44, s45, v2
                 v_add_u32 v44, {16*t}, v44
                 v_mul_lo_u32 v45, v44, s47
                 v_lshrrev_b32 v45, 23, v45
                 v_mul_u32_u24 v46, 176, v45
                 v_sub_u32 v46, v44, v46
                 v_mul_u32_u24 v41, 171, v45
                 v_min_u32 v42, 1873, v41
                 v_add_u32 v42, v42, v46
                 v_sub_u32 v41, v42, v41
                 v_cmp_gt_u32 vcc, 171, v41
                 v_mul_u32_u24 v41, 896, v42
                 v_lshl_add_u32 v41, v3, 3, v41
                 v_add_u32 v41, s46, v41
                 v_cndmask_b32 v{VXO+t}, -16, v41, vcc""")
        if sg:
            I(p, """v_min_u32 v42, 2047, v42
                    v_mul_lo_u32 v45, v42, s52
                    v_lshrrev_b32 v45, 22, v45
                    v_mul_u32_u24 v46, 94, v45
                    v_min_u32 v46, 1953, v46
                    v_sub_u32 v42, v42, v46
                    v_mul_u32_u24 v45, 96, v45
                    v_add_u32 v44, v42, v45""")
        I(p, f'v_lshl_add_u32 v{VAO+t}, v44, 4, v40')
    I(p, f"""s_mul_i32 s53, s32, {0 if sg else 19*4*CH}
            s_add_u32 s53, s53, {0 if sg else 64*CH}
            s_add_u32 s54, s53, {N*4*CH}
            s_mul_i32 s55, s42, {4*CH}
            s_add_u32 s55, s55, s53
            s_mov_b32 s18, 1835008
            s_mov_b32 s19, 0x20000
            s_mov_b32 s20, s24
            s_mov_b32 s21, s25
            s_mov_b32 s22, {AH_BYTES}
            s_mov_b32 s23, 0x20000""")
    if sg:
        G(p, """s_lshl_b32 s47, s66, 6
                s_mul_i32 s48, s47, 47663
                s_lshr_b32 s48, s48, 23
                s_mul_i32 s59, s48, 5
                s_cmp_eq_u32 s48, 11
                s_cselect_b32 s59, 63, s59
                s_sub_u32 s59, s47, s59
                s_mul_i32 s50, s59, 44621
                s_lshr_b32 s50, s50, 22
                s_add_u32 s47, s47, 63
                s_mul_i32 s49, s47, 47663
                s_lshr_b32 s49, s49, 23
                s_mul_i32 s59, s49, 5
                s_cmp_eq_u32 s49, 11
                s_cselect_b32 s59, 63, s59
                s_sub_u32 s59, s47, s59
                s_min_u32 s59, s59, 2047
                s_mul_i32 s51, s59, 44621
                s_lshr_b32 s51, s51, 22
                s_mul_i32 s48, s48, 14
                s_mul_i32 s49, s49, 14
                s_sub_u32 s49, s49, 14
                s_lshl_b32 s50, s50, 2
                s_add_u32 s50, s50, 140
                s_lshl_b32 s51, s51, 2
                s_add_u32 s51, s51, 136""")
        I(p, f"""v_min_u32 v47, 35, v1
                 v_mov_b32 v15, s48
                 v_mov_b32 v48, s49
                 v_cmp_le_u32 vcc, 14, v47
                 v_cndmask_b32 v15, v15, v48, vcc
                 v_mov_b32 v48, s50
                 v_cmp_le_u32 vcc, 28, v47
                 v_cndmask_b32 v15, v15, v48, vcc
                 v_mov_b32 v48, s51
                 v_cmp_le_u32 vcc, 32, v47
                 v_cndmask_b32 v15, v15, v48, vcc
                 v_add_u32 v15, v15, v47
                 v_lshlrev_b32 v15, 7, v15
                 v_add_u32 v15, {FLG}, v15
                 s_mov_b32 s48, 0x0fffffff
                 s_mov_b32 s49, 0
                 s_mov_b32 s50, 0xf0000000
                 s_mov_b32 s51, 15""")
    late_setup = p.ops[mark0:]; p.ops = p.ops[:mark0]
    def drip(k):
        for _ in range(k):
            if late_setup:
                o = late_setup.pop(0); o.idx = len(p.ops); p.ops.append(o)
    VW = 0
    I(p, f's_lshl_b32 s47, s30, 2\ns_add_u32 s47, s47, {PFL}\nv_mov_b32 v30, s47\nv_mov_b32 v31, 0\nv_xor_b32 v{VW}, 4, v30')
    I(p, 'ds_write_b32 v30, v31 offset:64', wr=[('tok_pfz', 0)])
    def poll(tag, mask, first):
        ld = 'buffer_load_dwordx2 v[4:5], v15, s[24:27], 0 offen ' + cfg.get('poll_fl', 'sc1') + '\n  s_waitcnt vmcnt(0)\n  '
        txt = f"""s_mov_b32 s65, 0
  {ld if first else ''}
L_pl{tag}:
  v_cmp_ne_u64 vcc, v[4:5], v[28:29]
  s_add_u32 s65, s65, 1
  s_cmp_ge_u32 s65, 0x40000
  s_cbranch_scc1 L_pd{tag}
  s_nop 1
  s_and_b64 vcc, vcc, s[{mask}:{mask+1}]
  s_cbranch_scc0 L_pd{tag}
  s_sleep {cfg.get('poll_sleep', 3)}
  {ld}s_branch L_pl{tag}
L_pd{tag}:"""
        p.add(txt, 'salu', [('v', 15), ('v', 28), ('v', 29), ('v', 4), ('v', 5), ('tok_nonce', 0)] + R('s', mask, 2),
              [('v', 4), ('v', 5), ('vcc', 0), ('tok_poll', tag), ('tok_vq', 0)])
        return ('tok_poll', tag)
    bp = bar('p', [('tok_ack', 0), ('tok_pfz', 0)] + [('tok_rd', n) for n in range(2, 2 + npre)])
    if sg:
        p.add(nonce_check('a') + '\n  s_cmp_lg_u32 s30, 6\n  s_cbranch_scc1 L_pea\n  ' + PUB + '\nL_pea:', 'salu', [bp, ('s', 30)] + R('v', 6, 2) + R('v', 28, 2), R('v', 6, 1) + R('v', 28, 2) + [('tok_vq', 0), ('tok_nonce', 0), ('vcc', 0)])
    p.add('s_waitcnt lgkmcnt(0)', 'salu', [bp], R('s', 16, 2))
    def pflag(val, tag, **kw):
        p.add(f"""L_pf{tag}{sg}:
  v_readfirstlane_b32 s64, v31
  s_nop 1
  s_cmp_ge_u32 s64, {val}
  s_cbranch_scc1 L_pfd{tag}{sg}
  ds_read_b32 v31, v30 offset:64
  s_waitcnt lgkmcnt(0)
  s_branch L_pf{tag}{sg}
L_pfd{tag}{sg}:""", 'rfl', [('v', 30), ('v', 31)], [('v', 31), ('s', 64), ('tok_pfo', tag), ('tok_vq', 0)], **kw)
        return ('tok_pfo', tag)
    VV = 146
    def setf(val, rd, **kw):
        I(p, f'v_mov_b32 v{VV}, {val}')
        I(p, f'ds_write_b32 v{VW}, v{VV} offset:64', rd=rd, wr=[('tok_pfz', 0), ('tok_vq', 0)], **kw)
    def getf(**kw): I(p, 'ds_read_b32 v31, v30 offset:64', rd=[('tok_pfz', 0)], wr=[('tok_vq', 0)], **kw)
    quick = 1
    rq = list(range(2 + npre, ne))
    first = list(range(11, min(N, 11 + npre)))
    for n in first:
        bd(n, [bp])
        for _ in range(-(-len(rq) // max(1, len(first)))  if n != first[-1] else 99):
            if rq and (len(rq) > 0): fread(rq.pop(0), t0)
            if n != first[-1] and _ >= 1: break
    while rq: fread(rq.pop(0), t0)
    b2 = bar('r', [('tok_rd', n) for n in range(2 + npre, ne)] + [('tok_bd', n) for n in range(ne, 10)])
    for n in range(ne, 10): fread(n, b2)
    rest = list(range(11 + npre, min(N, 9 + ne)))
    post = list(range(9 + ne, N))
    per = (len(late_setup) + len(rest) - 1) // max(1, len(rest))
    if sg:
        drip(999)
        I(p, 'buffer_load_dwordx2 v[4:5], v15, s[24:27], 0 offen sc1', rd=[('tok_nonce', 0)], wr=[('tok_vq', 0)])
    for n in rest:
        bd(n, [b2]); drip(per)
    drip(999)
    bgo = bar(4, ([poll(0, 48, not quick)] if sg else []) + [('tok_rd', n) for n in range(ne, 10)])
    go = poll(1, 50, False) if sg else bgo
    if sg: p.add('s_setprio 0', 'salu', [], [])
    if cfg.get('prio'):
        if sg: p.add('s_setprio 3', 'salu', [], [])
        else: p.add(f's_cmp_eq_u32 s32, 0\n  s_cbranch_scc1 L_np\n  s_setprio 1\n  s_cmp_eq_u32 s32, 1\n  s_cbranch_scc1 L_np\n  s_setprio 2\nL_np:' if cfg['prio'] == 2 else 's_nop 0', 'salu', [], [])
    p.fixed = len(p.ops)
    def aload(n):
        for t in range(2):
            I(p, f'v_add_u32 v{8+2*t}, s55, v{VAO+t}', rd=[go])
            I(p, f'buffer_load_dwordx4 {AR[(2*n+t) % (2*AD)]}, v{8+2*t}, s[20:23], 0 offen sc1', rd=[go], wr=[('tok_vq', 0)], dead=(n - AD) * 8 + 4 * t + 5)
        G(p, f's_add_u32 s55, s55, {4*CH}\ns_cmp_eq_u32 s55, s54\ns_cselect_b32 s55, s53, s55')
    for n in range(AD): aload(n)
    for n in range(N):
        if n == 3:
            for t in range(2):
                I(p, f'buffer_load_dwordx2 {vr(XR+2*t,2)}, v{VXO+t}, s[12:15], 0 offen', wr=[('tok_vq', 0)], dead=p.nm + 2)
        if quick:
            if post and n < 3: bdma(p, post.pop(0), rd=[bgo], early=p.nm, dead=p.nm + 1)
            nl = 0 if ne == 10 else 5
            if n == nl: setf(3, [('tok_bd', q) for q in range(NB, N)], early=p.nm - 1, dead=p.nm + 0.5)
            if n == nl + 1: getf(early=p.nm - 2, dead=p.nm)
            if n == nl + 2:
                land = pflag(3, 'l', early=p.nm - 3, dead=p.nm - 1)
                for q in range(NB, min(N, NB + nl + 2)): fread(q, land, dead=min(p.nm + 10 + 4 * (q - NB), 8 * q - 8))
        if n == 11: setf(4, [('tok_rd', q) for q in range(NB, NB + 3)], early=p.nm, dead=p.nm + 2)
        if n == N - 2: getf(early=p.nm, dead=p.nm + 2)
        for t in range(2):
            for ct in range(4):
                d = vr(ACC + 16 * t + 4 * ct, 4)
                mf(p, d, fr(n, 4 * ct, 4), AR[(2 * n + t) % (2 * AD)], d if n else '0')
        if n + AD < N: aload(n + AD)
        if n + NB < N and n >= nl + 2: fread(n + NB, land if quick else bgo, dead=p.nm + 10)
    I(p, f"""s_lshl_b32 s47, s31, 11
            v_lshl_add_u32 v12, v1, 4, s47
            v_lshl_add_u32 v16, v1, 4, s76""")
    fre = pflag(4, 'c', early=p.nm - 6)
    for c in range(1, 4):
        for t in range(2):
            I(p, f'ds_write_b128 v16, {vr(ACC+16*t+4*c,4)} offset:{rowaddr(ROWSEQ[9+c]) + 1024*t}', rd=[fre], wr=[('tok_xw', 0)])
    XU, E, RX = 64, 72, 80
    for i in range(4):
        I(p, f'v_lshlrev_b32 v{XU+2*i}, 16, v{XR+i}\nv_and_b32 v{XU+2*i+1}, 0xffff0000, v{XR+i}')
    def saddr(src, c): return rowaddr(ROWSEQ[9 + c]) + src * 4096
    if sg:
        for q in range(3): I(p, f'v_add_u32 v{17+q}, {saddr(q, q ^ 3)}, v12')
    else:
        tab = [[saddr(src, src ^ kq) for src in ((kq + 1) % 3, (kq + 2) % 3, 3)] for kq in range(3)]
        for q in range(3):
            G(p, f"""s_mov_b32 s{48+q}, {tab[0][q]}
                     s_cmp_eq_u32 s32, 1
                     s_cselect_b32 s{48+q}, {tab[1][q]}, s{48+q}
                     s_cmp_eq_u32 s32, 2
                     s_cselect_b32 s{48+q}, {tab[2][q]}, s{48+q}""")
            I(p, f'v_add_u32 v{17+q}, s{48+q}, v12')
    b6 = bar(6, [('tok_xw', 0)], early=1e6)
    own = [ACC, ACC + 2, ACC + 16, ACC + 18]
    for q in range(3):
        for t in range(2): I(p, f'ds_read_b128 {vr(RX+8*q+4*t,4)}, v{17+q} offset:{1024*t}', rd=[b6])
    if sg:
        for i in range(0, 8, 2): I(p, f'v_pk_add_f32 {vr(RX+i,2)}, {vr(RX+i,2)}, {vr(RX+8+i,2)}')
        for i in range(0, 8, 2): I(p, f'v_pk_add_f32 {vr(RX+i,2)}, {vr(RX+i,2)}, {vr(RX+16+i,2)}')
        S = own
    else:
        for i in range(0, 8, 2): I(p, f'v_pk_add_f32 {vr(RX+i,2)}, {vr(RX+i,2)}, {vr(own[i//2],2)}')
        for i in range(0, 8, 2): I(p, f'v_pk_add_f32 {vr(RX+i,2)}, {vr(RX+i,2)}, {vr(RX+8+i,2)}')
        S = [RX + 16 + i for i in range(0, 8, 2)]
    for i in range(8): I(p, f'v_mul_f32 v{E+i}, {f32(-1.4426950408889634)}, v{RX+i}')
    for i in range(8): I(p, f'v_exp_f32 v{E+i}, v{E+i}')
    for i in range(0, 8, 2): I(p, f'v_pk_mul_f32 {vr(RX+i,2)}, {vr(RX+i,2)}, {vr(S[i//2],2)}')
    for i in range(8): I(p, f'v_add_f32 v{E+i}, 1.0, v{E+i}')
    for i in range(8): I(p, f'v_rcp_f32 v{E+i}, v{E+i}')
    for i in range(0, 8, 2): I(p, f'v_pk_fma_f32 {vr(XU+i,2)}, {vr(RX+i,2)}, {vr(E+i,2)}, {vr(XU+i,2)}')
    for i in range(4): I(p, f'v_cvt_pk_bf16_f32 v{XR+i}, v{XU+2*i}, v{XU+2*i+1}')
    for t in range(2):
        I(p, f'buffer_store_dwordx2 {vr(XR+2*t,2)}, v{VXO+t}, s[16:19], 0 offen {cfg.get("ofl", "")}')
    class K: pass
    k = K(); k.p = p
    return k

def stamp(cfg, region, drain):
    if not cfg['stamp']: return ''
    mv = ''.join(f'  v_mov_b32 v{44+i}, s{82+2*i}\n' for i in range(9))
    return f'''  s_nop 7
{'  s_waitcnt vmcnt(0)' if drain else ''}
  s_memtime s[20:21]
  s_memrealtime s[22:23]
  s_waitcnt lgkmcnt(0)
  s_sub_u32 s20, s20, s78
  s_mov_b32 s16, s24
  s_mov_b32 s17, s25
  s_mov_b32 s18, 0x10000000
  s_mov_b32 s19, 0x20000
  s_lshl_b32 s3, s2, 3
  s_add_u32 s3, s3, s30
  s_lshl_b32 s3, s3, 6
  s_add_u32 s3, s3, {region}
  v_mov_b32 v40, s20
  v_mov_b32 v41, s80
  v_mov_b32 v42, s22
  v_mov_b32 v43, s78
  v_mov_b32 v39, 0
{mv}  s_mov_b64 exec, 1
  buffer_store_dwordx4 v[40:43], v39, s[16:19], s3 offen
  buffer_store_dwordx4 v[44:47], v39, s[16:19], s3 offen offset:16
  buffer_store_dwordx4 v[48:51], v39, s[16:19], s3 offen offset:32
  buffer_store_dword v52, v39, s[16:19], s3 offen offset:48
  s_mov_b64 exec, -1
  s_nop 1
'''

def fin(k, name, cfg):
    n = k.p.nm; st = cfg['stamp']
    mode = 0
    if st: mode = 'bars' if (name.startswith('s2') and cfg.get('bars', 1)) else ('pro' if st == 'pro' else max(1, (n + 6) // 7 - 1))
    if st and 'b1' in cfg and not name.startswith('s2'): mode = ('b', cfg['b1'])
    r = finalize(k.p, name, mode)
    if cfg.get('rt', 1): r = r.replace('s_memtime', 's_memrealtime')
    return r, sum(1 for o in k.p.ops if o.kind == 'bar')

def build(cfg):
    hdr = open('cdna_kernels/' + NAME + '.s.ref').read().split('\n')
    out = [l for l in hdr if l.startswith(';') and '@launch' not in l and 'Override launch' not in l and 'grid=ceil' not in l]
    KN = NAME + '_kernel'
    out.append('; @launch grid=(256,1,1) block=(512,1,1) lds=163840')
    s = '\n'.join(out) + '\n.amdgcn_target "amdgcn-amd-amdhsa--gfx950"\n.text\n'
    s += f'.globl {KN}\n.p2align 8\n.type {KN},@function\n{KN}:\n'
    if cfg['stamp']: s += '  s_memtime s[78:79]\n  s_memrealtime s[80:81]\n'
    s += f'''  s_load_dwordx2 s[12:13], s[0:1], 0
  s_load_dwordx2 s[24:25], s[0:1], 72
  s_load_dwordx2 s[4:5], s[0:1], 16
  s_load_dwordx2 s[8:9], s[0:1], 48
  v_lshrrev_b32 v2, 6, v0
  s_cmp_ge_u32 s2, 256
  s_cbranch_scc1 L_end
  v_readfirstlane_b32 s30, v2
  s_and_b32 s56, s2, 7
  s_lshr_b32 s57, s2, 3
  s_cmp_ge_u32 s57, 21
  s_cbranch_scc1 L_att
  s_load_dwordx2 s[16:17], s[0:1], 32
  s_load_dwordx2 s[20:21], s[0:1], 40
  s_load_dwordx2 s[68:69], s[0:1], 8
  ; ffn: rb = 3*(j>>1) + s/7 ; cb = 7*(j&1) + s%7
  s_mul_i32 s58, s57, 37
  s_lshr_b32 s58, s58, 8
  s_mul_i32 s59, s58, 7
  s_sub_u32 s59, s57, s59
  s_lshr_b32 s60, s56, 1
  s_mul_i32 s60, s60, 3
  s_add_u32 s58, s58, s60
  s_and_b32 s60, s56, 1
  s_mul_i32 s60, s60, 7
  s_add_u32 s59, s59, s60
  s_mul_i32 s33, s58, 176
  s_lshl_b32 s60, s33, 4
  s_mul_i32 s101, s58, 14
  s_add_u32 s101, s101, s59
  s_lshl_b32 s101, s101, 7
  s_add_u32 s101, s101, {FLG}
  s_mul_i32 s33, s58, 171
  s_min_u32 s33, s33, 1873
  s_lshl_b32 s43, s59, 8
  s_mul_i32 s46, s59, {16*CH}
  s_add_u32 s46, s46, {64*CH}
  s_add_u32 s46, s46, s60
'''
    e = stamp(cfg, 0x4000000, False) + '  s_branch L_s2\n'
    def two(gen, nm):
        r0, b0 = fin(gen(cfg, 0), nm + '0', cfg); r1, b1 = fin(gen(cfg, 1), nm + '1', cfg)
        assert b0 == b1, (b0, b1)
        h0, r0 = r0.split('  ;SPLIT\n'); h1, r1 = r1.split('  ;SPLIT\n')
        assert h0 == h1
        return h0 + f'  s_cmp_ge_u32 s30, 4\n  s_cbranch_scc1 L_{nm}1\n' + r0 + e + f'L_{nm}1:\n' + r1 + e
    s += two(gen_ffn, 'ffn')
    s += f'''L_att:
  s_load_dwordx2 s[16:17], s[0:1], 8
  s_lshr_b32 s58, s56, 2
  s_mul_i32 s58, s58, 11
  s_add_u32 s58, s58, s57
  s_sub_u32 s58, s58, 21
  s_and_b32 s59, s56, 3
  s_mul_i32 s60, s58, 94
  s_lshl_b32 s101, s58, 2
  s_add_u32 s101, s101, s59
  s_lshl_b32 s101, s101, 7
  s_add_u32 s101, s101, {FLG + 168*128}
  s_min_u32 s60, s60, 1953
  s_sub_u32 s33, s60, 16
  s_mul_i32 s43, s59, 224
  s_mul_i32 s46, s59, {16*CH}
  s_mul_i32 s60, s58, 1536
  s_add_u32 s46, s46, s60
  s_cmp_eq_u32 s58, 0
  s_cselect_b64 s[54:55], -1, 0
  s_lshl_b32 s47, s2, 3
  s_add_u32 s47, s47, s30
  s_cmp_lg_u32 s47, 2040
  s_cbranch_scc1 L_nononce
  s_load_dwordx2 s[36:37], s[0:1], 64
  s_memrealtime s[34:35]
  s_mov_b32 s38, 256
  s_mov_b32 s39, 0x20000
  v_mov_b32 v6, 0
  s_waitcnt lgkmcnt(0)
  s_or_b32 s34, s34, 1
  s_mul_i32 s35, s35, 0x9e3779b1
  s_xor_b32 s35, s35, s34
  v_mov_b32 v4, s34
  v_mov_b32 v5, s35
  s_mov_b64 exec, 1
  buffer_store_dwordx2 v[4:5], v6, s[36:39], 0 offen sc1
  s_mov_b64 exec, -1
L_nononce:
'''
    s += two(gen_att, 'att')
    s += '''L_s2:
  s_load_dwordx2 s[16:17], s[0:1], 56
  s_cmp_eq_u32 s70, 0
  s_cbranch_scc1 L_pub
  s_cmp_ge_u32 s30, 6
  s_cbranch_scc1 L_s2s
'''
    r0, b0 = fin(gen_s2(cfg, 0), 's2d', cfg); r1, b1 = fin(gen_s2(cfg, 1), 's2s', cfg)
    assert b0 == b1
    e2 = stamp(cfg, 0x4040000, True) + '  s_endpgm\n'
    s += r0 + e2 + 'L_s2s:\n' + r1 + e2
    s += 'L_pub:\n  ' + flag_off() + '\n  s_waitcnt vmcnt(0)\n  s_barrier\n  s_cmp_lg_u32 s30, 6\n  s_cbranch_scc1 L_end\n  ' + nonce_check('b') + '\n  ' + PUB + '\nL_end:\n  s_endpgm\n'
    s += f'''.section .rodata,"a"
.p2align 6
.amdhsa_kernel {KN}
  .amdhsa_next_free_vgpr 256
  .amdhsa_next_free_sgpr 102
  .amdhsa_accum_offset 176
  .amdhsa_group_segment_fixed_size 0
  .amdhsa_kernarg_size 80
  .amdhsa_user_sgpr_count 2
  .amdhsa_user_sgpr_kernarg_segment_ptr 1
  .amdhsa_system_sgpr_workgroup_id_x 1
.end_amdhsa_kernel
'''
    return s

if __name__ == '__main__':
    cfg = dict(CFG)
    out = 'cdna_kernels/' + NAME + '.s'
    for a in sys.argv[1:]:
        if a.startswith('out='): out = a[4:]; continue
        k, v = a.split('=', 1)
        cfg[k] = eval(v)
    open(out, 'w').write(build(cfg))
```

```python
import re

def R(p, a, n=1):
    return [(p, a + i) for i in range(n)]
def vr(a, n=1, p='v'):
    return f'{p}{a}' if n == 1 else f'{p}[{a}:{a+n-1}]'
def ar(a, n=1): return vr(a, n, 'a')
def sr(a, n=1): return vr(a, n, 's')

VALU_KINDS = ('valu', 'trans', 'pk', 'swap', 'dpp', 'rfl')
DS_KINDS = ('dsr', 'dsw')
VM_KINDS = ('vml', 'dma', 'vms')
SC_KINDS = ('salu', 'bar', 'wait', 'nop')

class Op:
    __slots__ = ('text', 'kind', 'rd', 'wr', 'early', 'dead', 'idx', 'preds', 'issue', 'maybe', 'srcc', 'glue', 'lat', 'done')
    def __init__(self, text, kind, rd=(), wr=(), early=-1e9, dead=None, maybe=False, srcc=(), lat=None):
        self.text, self.kind = text, kind
        self.rd, self.wr = list(rd), list(wr)
        self.early, self.dead = early, dead
        self.maybe = maybe
        self.srcc = list(srcc)
        self.glue = None
        self.lat = lat
        self.preds = []
        self.issue = None
        self.done = False

class Prog:
    def __init__(self, vm_lat=700, ds_lat=110, gap=16):
        self.gap = gap
        self.fixed = 0
        self.tail_fixed = None
        self.default_early = None
        self.dense_from = -1
        self.ops = []
        self.vm_lat, self.ds_lat = vm_lat, ds_lat
        self.nm = 0
    def add(self, text, kind, rd=(), wr=(), pre=(), post=(), **kw):
        o = Op(text, kind, rd, wr, **kw)
        if self.default_early is not None and 'early' not in kw and kind in ('valu', 'salu', 'trans', 'swap', 'dpp'): o.early = self.default_early
        if pre or post:
            o.glue = (list(pre), list(post))
        o.idx = len(self.ops)
        if kind == 'mfma':
            self.nm += 1
        self.ops.append(o)
        return o
    def latency(self, p, c, raw):
        if not raw:
            if p.kind in DS_KINDS or p.kind in VM_KINDS:
                return 4
            if p.kind == 'mfma':
                return 16
            return 4
        if p.lat is not None: return p.lat
        if p.kind in VM_KINDS: return self.vm_lat
        if p.kind in DS_KINDS: return self.ds_lat
        if p.kind == 'mfma':
            pw = {r for r in p.wr if r[0] in 'va'}
            if c.kind == 'mfma' and set(c.srcc) == pw and not (pw & (set(c.rd) - set(c.srcc))):
                return 0
            return 44
        if p.kind in VALU_KINDS:
            if c.kind in ('mfma', 'swap', 'dpp'): return 12
            if p.kind == 'trans': return 12
            return 4
        return 4
    def build(self):
        lastw, readers = {}, {}
        for o in self.ops:
            pr = {}
            for r in o.rd:
                if r in lastw:
                    p = lastw[r]; pr[p.idx] = max(pr.get(p.idx, 0), self.latency(p, o, True))
            for r in o.wr:
                if r in lastw:
                    p = lastw[r]
                    isreg = r[0] in 'vas' and isinstance(r[1], int)
                    pr[p.idx] = max(pr.get(p.idx, 0), self.latency(p, o, isreg and (p.kind in VM_KINDS + DS_KINDS + ('mfma',)) and not (o.kind == 'mfma' and p.kind == 'mfma')))
                for p in readers.get(r, ()):
                    if p is not o:
                        pr[p.idx] = max(pr.get(p.idx, 0), self.latency(p, o, False))
            o.preds = list(pr.items())
            for r in o.rd:
                readers.setdefault(r, []).append(o)
            for r in o.wr:
                lastw[r] = o; readers[r] = []
    def schedule(self, verbose=False):
        self.build()
        allops = self.ops
        ops = allops, None
        ops = allops
        tf = self.tail_fixed if self.tail_fixed is not None else len(ops)
        mf = [o for o in ops[:tf] if o.kind == 'mfma']
        mpos = {o.idx: i for i, o in enumerate(mf)}
        INF = len(mf) + 1000
        dl = [INF + o.idx * 1e-6 for o in ops]
        for o in reversed(ops):
            if o.idx in mpos: dl[o.idx] = mpos[o.idx]
            if o.dead is not None: dl[o.idx] = min(dl[o.idx], o.dead)
            for (p, lat) in o.preds:
                dl[p] = min(dl[p], dl[o.idx] - lat / float(self.gap) - 0.01)
        fill = [o for o in ops[:tf] if o.kind != 'mfma']
        fill.sort(key=lambda o: (dl[o.idx], o.idx))
        out = []
        t = 0
        def ready_time(o):
            rt = 0
            for (p, lat) in o.preds:
                q = ops[p]
                if q.issue is None: return None
                rt = max(rt, q.issue + lat)
            return rt
        def cost(o):
            c = 8 if o.kind in ('trans', 'swap') else 4
            c += 4 * min(o.text.count('\n'), 40)
            if o.glue: c += 4 * (len(o.glue[0]) + len(o.glue[1]))
            return c
        seqno = {}
        waited = {'vm': -1, 'lg': -1}
        def q_of(o):
            return 'vm' if o.kind in VM_KINDS else ('lg' if o.kind in DS_KINDS else None)
        def needs_wait(o):
            for (p, lat) in o.preds:
                q = q_of(ops[p])
                if q and lat > 4 and p in seqno and seqno[p] > waited[q]: return True
            return False
        def mark_wait(o):
            for (p, lat) in o.preds:
                q = q_of(ops[p])
                if q and lat > 4 and p in seqno: waited[q] = max(waited[q], seqno[p])
        def emit(o, t):
            mark_wait(o)
            o.issue = t; o.done = True
            if q_of(o): seqno[o.idx] = len(out)
            out.append(o)
        def force(o):
            nonlocal t
            for (p, lat) in sorted(o.preds):
                if ops[p].issue is None:
                    assert ops[p].kind != 'mfma', f'mfma order violated: {o.text} needs {ops[p].text}'
                    force(ops[p])
            rt = ready_time(o)
            o.done = True
            while rt > t:
                q = pick(cur_i[0], t, VALU_KINDS + DS_KINDS + VM_KINDS + ('salu',), 64)
                if q is None: break
                emit(q, t); t += cost(q)
            t = max(t, rt)
            emit(o, t); t += cost(o)
        cur_i = [-1]
        def pick(cur, tnow, allow, budget, maxdl=1e18):
            for o in fill:
                if o.done: continue
                if dl[o.idx] > maxdl: return None
                if o.early > cur: continue
                if o.kind not in allow: continue
                c = cost(o)
                if c > budget and not (c > 12 and '\n' in o.text and budget >= 12): continue
                rt = ready_time(o)
                if rt is None or rt > tnow: continue
                return o
            return None
        stall = 0
        for o in ops[:self.fixed]:
            emit(o, t); t += cost(o)
        for o in sorted([q for q in fill if q.dead is not None and q.dead <= -500], key=lambda q: (q.dead, q.idx)):
            if o.issue is None: force(o)
        for i, m in enumerate(mf):
            cur_i[0] = i - 1
            for (p, lat) in sorted(m.preds):
                if ops[p].issue is None: force(ops[p])
            rt = ready_time(m)
            while rt > t:
                o = pick(i - 1, t, VALU_KINDS + DS_KINDS + VM_KINDS + SC_KINDS, 64)
                if o is None: break
                emit(o, t); t += cost(o)
            if rt > t: stall += rt - t; t = rt
            emit(m, t)
            t0 = t
            fill = [o for o in fill if not o.done]
            VEC2 = DS_KINDS + VM_KINDS + ('valu', 'trans', 'swap', 'dpp', 'rfl')
            nxt = mf[i + 1] if i + 1 < len(mf) else None
            wait_needed = nxt is not None and needs_wait(nxt)
            used = 0
            s1 = pick(i, t0 + 4, ('bar',), 64) or pick(i, t0 + 4, ('salu',), 4)
            if s1 is not None and (s1.kind == 'bar' or not wait_needed):
                if needs_wait(s1): used += 4; mark_wait(s1)
                emit(s1, t0 + 4); slot1 = True
            else:
                slot1 = False
            if wait_needed and slot1: used += 4
            if used < 8:
                o = pick(i, t0 + 8, VEC2 + ('salu',), 16 if used == 0 else 4)
                if o is not None and slot1 and not wait_needed and needs_wait(o):
                    used += 4; wait_needed = True
                if o is not None:
                    if needs_wait(o): wait_needed = True
                    mark_wait(o)
                    c = cost(o)
                    if o.glue and not slot1 and not wait_needed: c -= 4
                    emit(o, t0 + 8); used += c
                    if used <= 4:
                        o2 = pick(i, t0 + 12, ('valu', 'dpp', 'rfl', 'salu'), 4)
                        if o2 is not None and not (slot1 and not wait_needed and needs_wait(o2)):
                            mark_wait(o2)
                            emit(o2, t0 + 12); used += 4
            if self.gap > 16:
                while 8 + used < self.gap - 4 - getattr(self, 'slack', 0):
                    o = pick(i, t0 + 8 + used, ('valu', 'trans', 'swap', 'dpp', 'rfl', 'salu') if i >= self.dense_from else ('salu',), self.gap - 8 - used)
                    if o is None: break
                    emit(o, t0 + 8 + used); used += cost(o)
            t = t0 + max(self.gap, 8 + used)
            tt = t0 + 8 + used
            while True:
                o = pick(i, tt, VALU_KINDS + DS_KINDS + VM_KINDS + SC_KINDS, 64, maxdl=i + 0.5)
                if o is None: break
                emit(o, tt); tt += cost(o)
            t = max(t, tt)
        fill = [o for o in fill if not o.done]
        while fill:
            o = pick(1e9, t, VALU_KINDS + DS_KINDS + VM_KINDS + SC_KINDS, 64)
            if o is None:
                cand = [(ready_time(o), k) for k, o in enumerate(fill) if ready_time(o) is not None]
                tt, k = min(cand); stall += tt - t; t = tt; continue
            emit(o, t); t += cost(o)
            fill = [o for o in fill if not o.done]
        for o in ops[tf:]:
            rt = ready_time(o)
            if rt > t: stall += rt - t; t = rt
            emit(o, t); t += (16 if o.kind == 'mfma' else cost(o))
        self.est = (t, stall, len(mf))
        return out

def expand(seq):
    res = []
    for o in seq:
        if o.glue:
            res += o.glue[0]; res.append(o); res += o.glue[1]
        else:
            res.append(o)
    return res

def insert_waits(seq, vm0=(), lg0=()):
    out = []
    vmq, lgq = [], []
    pend = {}
    pos = {}
    for o in seq:
        needv, needl = None, None
        for r in list(o.rd) + [w for w in o.wr if w[0] in 'vas' and isinstance(w[1], int)]:
            p = pend.get(r)
            if p is None: continue
            if p in vmq:
                k = vmq.index(p); needv = k if needv is None else max(needv, k)
            elif p in lgq:
                if o.kind in DS_KINDS and not (r[0] in 'vas' and isinstance(r[1], int)): continue
                k = lgq.index(p); needl = k if needl is None else max(needl, k)
        if needv is not None or needl is not None:
            ins = len(out)
            j = len(out) - 1
            lim = max(pos[id(vmq[needv])] if needv is not None else -1, pos[id(lgq[needl])] if needl is not None else -1)
            steps = 0
            while j > lim and steps < 4:
                if out[j].kind == 'mfma':
                    ins = j + 1; break
                if out[j].kind == 'bar': break
                j -= 1; steps += 1
            def cnt(q, k):
                return sum(1 for x in q[k + 1:] if pos[id(x)] < ins and not x.maybe)
            v = min(63, cnt(vmq, needv)) if needv is not None else None
            l = min(15, cnt(lgq, needl)) if needl is not None else None
            if ins < len(out) and out[ins].kind == 'wait':
                w = out[ins]
                pv, pl = w.rd
                v = pv if v is None else (v if pv is None else min(v, pv))
                l = pl if l is None else (l if pl is None else min(l, pl))
                w.rd = (v, l)
            else:
                w = Op('', 'wait'); w.rd = (v, l)
                out.insert(ins, w)
                for x in out[ins + 1:]:
                    if id(x) in pos: pos[id(x)] += 1
            if needv is not None: vmq = vmq[needv + 1:]
            if needl is not None: lgq = lgq[needl + 1:]
        pos[id(o)] = len(out)
        out.append(o)
        if o.kind in VM_KINDS:
            vmq.append(o)
            for w in o.wr:
                if w[0] not in ('s', 'vcc'): pend[w] = o
        elif o.kind in DS_KINDS:
            lgq.append(o)
            for w in o.wr: pend[w] = o
        else:
            for w in o.wr: pend.pop(w, None)
    for w in out:
        if w.kind == 'wait' and not w.text:
            v, l = w.rd
            w.text = 's_waitcnt' + (f' vmcnt({v})' if v is not None else '') + (f' lgkmcnt({l})' if l is not None else '')
            w.rd = []
    return out

def insert_nops(seq):
    out = []
    hist = []
    st = 0
    nn = 0
    for o in seq:
        need = 0
        rd, wr = {r for r in o.rd if not r[0].startswith('tok')}, {r for r in o.wr if not r[0].startswith('tok')}
        for (p, ps) in reversed(hist):
            d = st - ps - 1
            if d >= 12: break
            pw, prd = {r for r in p.wr if not r[0].startswith('tok')}, set(p.rd)
            req = 0
            if p.kind == 'mfma':
                if o.kind == 'mfma':
                    ab = rd - set(o.srcc)
                    if pw & ab: req = 8
                    elif pw & set(o.srcc): req = 0 if set(o.srcc) == pw else 6
                    elif pw & wr: req = 0 if wr == pw else 6
                elif o.kind in VALU_KINDS + DS_KINDS + VM_KINDS:
                    if pw & (rd | wr): req = 8
                    elif set(p.srcc) & wr: req = 3
            elif p.kind in VALU_KINDS:
                vw = {r for r in pw if r[0] in 'va'}
                sw = {r for r in pw if r[0] == 's' or r == ('vcc', 0)}
                if o.kind == 'mfma' and vw & rd: req = 2
                if o.kind in ('swap', 'dpp') and vw & rd: req = 2
                if o.kind == 'rfl' and vw & rd: req = max(req, 1)
                if p.kind == 'trans' and o.kind in VALU_KINDS and o.kind != 'trans' and vw & rd: req = max(req, 1)
                if sw & rd:
                    if o.kind in VALU_KINDS: req = max(req, 2)
                    if o.kind in VM_KINDS: req = max(req, 5)
                    if o.kind == 'salu': req = max(req, 1)
            elif p.kind in ('vms', 'dsw'):
                if {r for r in prd if r[0] in 'va'} & wr: req = 2
            elif p.kind == 'salu':
                if ('m0', 0) in pw and o.kind == 'dma': req = 1
            need = max(need, req - d)
        if need > 0:
            n = Op(f's_nop {need-1}', 'nop'); out.append(n); st += need; nn += need
        out.append(o)
        hist.append((o, st)); st += 1
        if len(hist) > 40: hist = hist[-20:]
    return out, nn

def finalize(prog, name='', stamps=0):
    seq = expand(prog.schedule())
    seq = insert_waits(seq)
    seq, nn = insert_nops(seq)
    if isinstance(stamps, tuple):
        res, k, nb = [], 0, 0
        for o in seq:
            res.append(o)
            if o.kind == 'bar':
                if nb >= stamps[1] and k < 8:
                    res.append(Op(f's_memtime s[{82+2*k}:{83+2*k}]', 'nop')); k += 1
                nb += 1
        res.append(Op('s_memtime s[98:99]', 'nop'))
        seq = res
    elif stamps == 'bars':
        res, k = [], 0
        for o in seq:
            res.append(o)
            if (o.kind == 'bar' or (o.kind == 'rfl' and 'L_pf' in o.text) or (o.kind == 'salu' and 'L_pl' in o.text)) and k < 8:
                res.append(Op(f's_memtime s[{82+2*k}:{83+2*k}]', 'nop')); k += 1
        res.append(Op('s_memtime s[98:99]', 'nop'))
        seq = res
    elif stamps == 'pro':
        res, k, nv = [], 0, 0
        def st():
            nonlocal k
            if k < 8: res.append(Op(f's_memtime s[{82+2*k}:{83+2*k}]', 'nop')); k += 1
        nb = 0
        for i, o in enumerate(seq):
            if o.kind == 'bar' and nb == 0: st()
            if o.kind == 'wait' and 'vmcnt' in o.text and nb == 0 and k == 4: st()
            res.append(o)
            if o.kind == 'salu' and o.text.startswith('s_waitcnt lgkmcnt(0)') and k == 0: st()
            if o.kind in ('dma', 'vml') and nb == 0:
                nv += 1
                if nv in (5, 9, 13): st()
            if o.kind == 'bar':
                nb += 1
                if nb == 1: st()
            if o.kind == 'mfma' and k == 7: st()
        res.append(Op('s_memtime s[98:99]', 'nop'))
        seq = res
    elif stamps:
        res, n, k = [], 0, 0
        for o in seq:
            res.append(o)
            if o.kind == 'mfma':
                if n % stamps == 0 and k < 8:
                    res.append(Op(f's_memtime s[{82+2*k}:{83+2*k}]', 'nop')); k += 1
                n += 1
        res.append(Op('s_memtime s[98:99]', 'nop'))
        seq = res
    from collections import Counter
    c = Counter(o.kind for o in seq)
    print(f'[{name}] est cycles {prog.est[0]} stall {prog.est[1]} mfma {prog.est[2]} nop-states {nn} mix {dict(c)}')
    return '\n'.join('  ' + o.text for o in seq) + '\n'


_reg = re.compile(r'\b([vas])(\d+)\b|\b([vas])\[(\d+):(\d+)\]|\b(vcc|exec|m0)\b')
def regs_of(tok):
    res = []
    for m in _reg.finditer(tok):
        if m.group(1): res.append((m.group(1), int(m.group(2))))
        elif m.group(3): res += R(m.group(3), int(m.group(4)), int(m.group(5)) - int(m.group(4)) + 1)
        else: res.append((m.group(6), 0))
    return res
def split_ops(text):
    name, _, rest = text.strip().partition(' ')
    toks, depth, cur = [], 0, ''
    for ch in rest:
        if ch == '[': depth += 1
        if ch == ']': depth -= 1
        if ch == ',' and depth == 0:
            toks.append(cur.strip()); cur = ''
        else: cur += ch
    toks.append(cur.strip())
    last = toks[-1].split(' ')
    toks[-1] = last[0]
    return name, toks
TRANS = ('v_exp_f32', 'v_rcp_f32', 'v_rsq_f32', 'v_sqrt_f32', 'v_log_f32')
NOSCC = ('s_mov_b32', 's_mov_b64', 's_mul_i32', 's_cselect_b32', 's_cselect_b64', 's_movk_i32')
def auto(text):
    name, t = split_ops(text)
    if name.startswith('v_mfma'):
        c = regs_of(t[3])
        return 'mfma', regs_of(t[1]) + regs_of(t[2]) + c, regs_of(t[0]), c
    if name.startswith('ds_read') or name == 'ds_bpermute_b32':
        return 'dsr', [r for x in t[1:] for r in regs_of(x)], regs_of(t[0]), ()
    if name.startswith('ds_write'):
        return 'dsw', [r for x in t for r in regs_of(x)], [], ()
    if name.startswith('buffer_load'):
        if text.rstrip().endswith('lds'):
            return 'dma', [r for x in t for r in regs_of(x)] + [('m0', 0)], [], ()
        return 'vml', [r for x in t[1:] for r in regs_of(x)], regs_of(t[0]), ()
    if name.startswith('buffer_store'):
        return 'vms', [r for x in t for r in regs_of(x)], [], ()
    if name.startswith('s_'):
        if name.startswith('s_cmp') or name.startswith('s_bitcmp'):
            return 'salu', [r for x in t for r in regs_of(x)], [], ()
        rd = [r for x in t[1:] for r in regs_of(x)]
        wr = regs_of(t[0])
        return 'salu', rd, wr, ()
    rd = [r for x in t[1:] for r in regs_of(x)]
    wr = regs_of(t[0])
    if name.startswith('v_permlane'):
        return 'swap', wr + rd, wr + rd, ()
    if name.startswith('v_fmac') or name.startswith('v_dot2c'): rd += wr
    if name.endswith('_dpp'): return 'dpp', rd + wr, wr, ()
    if name == 'v_readfirstlane_b32': return 'rfl', rd, wr, ()
    if name.startswith('v_pk_') or name.startswith('v_dot'): return 'pk', rd, wr, ()
    if name in TRANS: return 'trans', rd, wr, ()
    return 'valu', rd, wr, ()
def mk(text, rd=(), wr=(), **kw):
    k, r, w, c = auto(text)
    return Op(text, k, r + list(rd), w + list(wr), srcc=c, **kw)
def I(p, text, rd=(), wr=(), **kw):
    o = None
    for line in text.split('\n'):
        line = line.strip()
        if not line: continue
        assert not line.startswith('s_cmp') and not line.startswith('s_cselect')
        k, r, w, c = auto(line)
        o = p.add(line, k, r + list(rd), w + list(wr), srcc=c, **kw)
    return o

def G(p, text, **kw):
    lines = [l.strip() for l in text.split('\n') if l.strip()]
    rd, wr = [], []
    for l in lines:
        k, r, w, c = auto(l)
        assert k == 'salu'
        rd += r; wr += w
    return p.add('\n  '.join(lines), 'salu', rd, wr, **kw)

def timeline(prog, step=47):
    mf = [o for o in prog.ops if o.kind == 'mfma']
    if mf: print('   t@mfma:', [(i, mf[i].issue) for i in range(0, len(mf), step)], 'last', mf[-1].issue)
```

```python
import sys, struct
sys.path.insert(0, 'gen')
from sched import *

NAME = 'recurrent_scan__sliding_local_dilated__glu_gated_bilinear__prompt'
CH = 33792
AH_BYTES = 288 * CH
FLG = AH_BYTES
STO = AH_BYTES + 256 * 128
WS_BYTES = STO + 2048 * 16
CSL, CVL, PFL, LA, RA = 1536, 2560, 3072, 3584, 26112
CFG = dict(pq=2, s2_npre=4, lazy=1, ne=10, att_loop=6, att_sp=0.7, pfx=0, ofl='nt', phi=0, lk0=4, first=2, first_a=3, lk1=2, lims=[(5,3),(4,3),(5,3),(5,4),(5,4)], KT=12, stamp=False, st_flags='sc1', pf2=0, k2_rot=2, pfC=4, pfsw=[(0,2,4),(2,4,7)])
def f32(x): return '0x%08x' % struct.unpack('<I', struct.pack('<f', x))[0]
def mf(p, d, a, b, c, **kw): return I(p, f'v_mfma_f32_16x16x32_bf16 {d}, {a}, {b}, {c}', **kw)
ROWSEQ = [0, 0, 1, 2, 3, 4, 0, 5, 6, 7, 8, 1, 2, 3, 4, 0, 5, 6, 7]
def rowaddr(r): return LA if r == 8 else RA + 16384 * r
BLOCKS = [('a', 48), ('a', 64), ('a', 0), ('a', 16), ('a', 32)] + [('v', 64 + 16 * i) for i in range(5)]
def fr(n, o, c): b = BLOCKS[n % 10]; return vr(b[1] + o, c, b[0])

def bdma(p, n, rd=(), **kw):
    for h in range(2):
        v = 12 if h == 0 else 9
        I(p, f'v_add_u32 v12, s72, v11' if h == 0 else 'v_add_u32 v9, 7168, v12')
        I(p, f's_add_u32 m0, s76, {rowaddr(ROWSEQ[n]) + 1024*h}')
        kk = dict(kw)
        if 'early' in kk: kk['early'] += 2 * h; kk['dead'] += 2 * h
        I(p, f'buffer_load_dwordx4 v{v}, s[68:71], 0 offen lds', rd=list(rd), wr=[('tok_bd', n), ('tok_vq', 0)], **kk)
    G(p, 's_add_u32 s72, s72, s75\ns_cmp_eq_u32 s72, s73\ns_cselect_b32 s72, s74, s72')
def GS(p, text):
    lines = [l.strip() for l in text.split('\n') if l.strip()]
    i = 0
    while i < len(lines):
        if lines[i].startswith(('s_cmp', 's_bitcmp')):
            j = i + 1
            while j < len(lines) and lines[j].startswith(('s_cselect', 's_mov_b32')) and any(l.startswith('s_cselect') for l in lines[j:j+2]) and j - i < 4: j += 1
            G(p, '\n'.join(lines[i:j]))
            if j < len(lines) and (lines[j].startswith('s_cselect') or (lines[j].startswith('s_mov_b32') and j + 1 < len(lines) and lines[j+1].startswith('s_cselect'))):
                lines.insert(j, lines[i])
            i = j
        else:
            I(p, lines[i]); i += 1
def tr_setup(p, V, base, T):
    I(p, f"""v_lshrrev_b32 v{T}, 2, v1
            v_lshlrev_b32 v{T}, 7, v{T}
            v_and_b32 v{T+1}, 3, v1
            v_lshl_add_u32 v{T}, v{T+1}, 3, v{T}
            v_bfe_u32 v{T+1}, v1, 3, 2
            v_xor_b32 v{T+1}, s32, v{T+1}
            v_lshl_add_u32 v{T}, v{T+1}, 5, v{T}
            s_lshl_b32 s47, s32, 12
            s_add_u32 s47, s47, {base}
            v_add_u32 v{V}, s47, v{T}
            v_xor_b32 v{V+1}, 32, v{V}
            v_xor_b32 v{V+2}, 64, v{V}
            v_xor_b32 v{V+3}, 96, v{V}""")

class S1:
    def __init__(self, att, grp, cfg):
        self.att, self.grp, self.cfg = att, grp, cfg
        self.p = Prog(vm_lat=cfg.get('vm_lat', 900), gap=32, ds_lat=cfg.get('dsl_a' if att else 'dsl_f', 110))
        if att:
            self.NT, self.NI, self.pitch, self.NM = 7, 11, 2688, 3
            XA, XB, XC = RA, RA + 16384, RA + 71680
            w0 = RA + 30720
            self.WS = [w0 + 8192 * i for i in range(5)] + [RA + 86016 + 8192 * i for i in range(6)]
            self.wph = 2
        else:
            self.NT, self.NI, self.pitch, self.NM = 11, 8, 3584, 2
            XA, XB, XC = RA, RA + 22528, RA + 94208
            self.WS = [RA + 45056 + 8192 * i for i in range(6)] + [RA + 116736, RA + 124928]
            self.wph = 4
        assert self.WS[-1] + 8192 <= 163840
        self.XS = [XB, XC, XA, LA, XB, XC, LA]
        self.XPREV = {4: 0, 5: 1, 6: 3}
        if att and cfg.get('x_xp'): self.XPREV[6] = 2
        self.WB = self.WS[0]
        self.ONES = self.NT * 16 - 1
        self.NU = (self.NT + 3) // 4
        self.dmaq, self.have, self.wmap, self.pending_free = [], set(), {}, []
        self.xring = 0; self.nimg = 0; self.lastbar = 0
        self.t0 = (0 if att else 6) * grp
        self.rot = cfg.get('phi', 0) if not att else cfg.get('phia', 0)
    V_OFFX, V_XB, V_PF, V_TR, V_XH = 10, 13, 15, 17, 21
    V_TABW, V_TABR, V_OFFW, V_CSA = 30, 27, 32, 34
    def waddr(self, u): return self.WS[(u + self.wph) % self.NI]
    def head(self):
        p, att = self.p, self.att
        if self.cfg.get('pfi', 1):
            nm = 'att' if att else 'ffn'; KN = NAME + '_kernel'; NL = self.cfg.get('pfin', 8)
            p.add(f"""s_getpc_b64 s[48:49]
L_pc{nm}:
  s_sub_u32 s48, s48, L_pc{nm}-{KN}
  s_subb_u32 s49, s49, 0
  s_mov_b32 s50, L_{nm}0-{KN}
  s_cmp_ge_u32 s30, 4
  s_cselect_b32 s50, L_{nm}1-{KN}, s50
  s_lshl_b32 s51, s57, 3
  s_add_u32 s51, s51, s30
  s_lshl_b32 s51, s51, 8
  v_and_b32 v1, 63, v0
  v_and_b32 v4, 1, v1
  v_lshl_add_u32 v4, v4, 7, s51
  v_lshl_add_u32 v5, v1, 7, s50
  v_cmp_gt_u32 vcc, {NL}, v1
  s_nop 1
  v_cndmask_b32 v4, v4, v5, vcc
  v_min_u32 v4, L_end-{KN}, v4
  v_mov_b32 v5, s49
  v_add_co_u32 v4, vcc, s48, v4
  s_nop 1
  v_addc_co_u32 v5, vcc, 0, v5, vcc
  global_load_dword v35, v[4:5], off""", 'vml', [], [], lat=4)
        p.add('s_load_dwordx2 s[60:61], s[0:1], 64', 'salu', [], [])
        p.add('s_load_dwordx2 s[72:73], s[0:1], 56', 'salu', [], [])
        I(p, 'v_and_b32 v1, 63, v0\ns_and_b32 s29, s30, 3\ns_and_b32 s31, s30, 1\ns_lshr_b32 s32, s30, 1')
        I(p, 'v_lshrrev_b32 v3, 4, v1\nv_and_b32 v2, 15, v1')
        I(p, 's_mov_b32 s14, 1835008\ns_mov_b32 s15, 0x20000\ns_mov_b32 s19, 0x20000')
        I(p, f's_mov_b32 s18, {1204224 if att else 1605632}')
        if not att: I(p, 's_mov_b32 s22, 1605632\ns_mov_b32 s23, 0x20000')
        I(p, f"""s_lshl_b32 s47, s32, 2
                 s_and_b32 s47, s47, 4
                 v_or_b32 v4, s47, v3
                 v_lshlrev_b32 v5, 1, v4
                 v_xor_b32 v5, v5, v2
                 s_mul_i32 s52, s30, {4*self.pitch}
                 s_add_u32 s52, s52, s43
                 v_mul_u32_u24 v6, {self.pitch}, v3
                 v_lshl_add_u32 v6, v5, 4, v6
                 v_add_u32 v{self.V_OFFW}, s52, v6""")
        if att:
            I(p, f'v_cmp_le_u32 vcc, 14, v5\nv_mov_b32 v6, 0x40000000\nv_cndmask_b32 v{self.V_OFFW}, v{self.V_OFFW}, v6, vcc')
        I(p, f"""v_add_u32 v{self.V_OFFW+1}, {32*self.pitch}, v{self.V_OFFW}
                 s_lshl_b32 s41, s30, 10
                 s_lshl_b32 s53, s31, 2
                 v_or_b32 v4, s53, v3
                 v_and_b32 v5, 7, v1
                 v_xor_b32 v4, v4, v5
                 v_lshrrev_b32 v5, 3, v1
                 v_mul_u32_u24 v5, 896, v5
                 v_lshl_add_u32 v{self.V_OFFX}, v4, 4, v5
                 s_lshl_b32 s39, s30, 3
                 s_add_u32 s39, s39, s33
                 s_mul_i32 s39, s39, 896""")
        if self.rot == -1:
            I(p, f's_mul_i32 s28, s57, {self.cfg.get("rmul", 1)}\ns_mul_i32 s47, s28, 9363\ns_lshr_b32 s47, s47, 16\ns_mul_i32 s47, s47, 7\ns_sub_u32 s28, s28, s47')
        elif self.rot == -2:
            I(p, 's_and_b32 s28, s57, 1\ns_lshl_b32 s28, s28, 2')
        elif self.rot == -3:
            I(p, 's_mul_i32 s47, s57, 37\ns_lshr_b32 s47, s47, 8\ns_add_u32 s28, s57, s47\ns_mul_i32 s47, s28, 43\ns_lshr_b32 s47, s47, 7\ns_mul_i32 s47, s47, 3\ns_sub_u32 s28, s28, s47\ns_lshl_b32 s28, s28, 1')
        elif self.rot:
            I(p, f's_lshl_b32 s28, s56, 2\ns_lshr_b32 s28, {self.rot}, s28\ns_and_b32 s28, s28, 7')
        for n in range(self.NU):
            if n == 0 and att: I(p, 's_max_i32 s34, s39, 0')
            else: I(p, f's_add_u32 s{34+n}, s39, {n*64*896}')
        if self.rot:
            I(p, 's_lshl_b32 s100, s28, 7')
            for n in range(self.NU): I(p, f's_add_u32 s{34+n}, s{34+n}, s100')
        G(p, """s_cmp_eq_u32 s30, 5
                s_cselect_b32 s45, 0x00ffffff, -1
                s_cmp_ge_u32 s30, 6
                s_cselect_b32 s45, 0, s45
                s_cselect_b32 s44, 0, -1""")
        p.add('s_waitcnt lgkmcnt(0)', 'salu', [], R('s', 12, 2) + R('s', 16, 2) + R('s', 20, 2) + R('s', 24, 2) + R('s', 4, 2) + R('s', 8, 2) + R('s', 60, 2) + R('s', 68, 2) + R('s', 72, 2))
        for j in range(7):
            for m in range(self.NM): self.q_w(2 * j, m)
            for n in range(self.NU): self.dmaq.append(('x', j, n))
            for m in range(self.NM): self.q_w(2 * j + 1, m)
        self.pump(limit=5, at=-999)
        if self.cfg.get('ob', 1): p.add('s_barrier', 'bar', [], [('tok_bar', 0), ('tok_ep', 0)])
        p.add(';SPLIT', 'salu', [], [])
        p.fixed = len(p.ops)
        if self.cfg.get('lazy', 1): p.default_early = 0
    def setup_b(self, V_ST):
        p, att = self.p, self.att
        self.V_ST = V_ST
        I(p, f's_mov_b32 s27, 0x20000\ns_mov_b32 s26, {WS_BYTES}')
        I(p, f"""v_lshrrev_b32 v4, 1, v2
                 v_xor_b32 v4, v4, v3
                 v_lshlrev_b32 v5, 7, v2
                 v_add_u32 v5, {self.t0*2048}, v5
                 v_lshl_add_u32 v{self.V_XB}, v4, 4, v5
                 v_xor_b32 v{self.V_XB+1}, 64, v{self.V_XB}
                 v_add_u32 v{self.V_XH}, 65536, v{self.V_XB}
                 v_add_u32 v{self.V_XH+1}, 65536, v{self.V_XB+1}""")
        I(p, f"""v_bfe_u32 v4, v1, 2, 2
                 v_lshl_add_u32 v5, v3, 3, v4
                 v_lshlrev_b32 v5, 8, v5
                 v_add_u32 v5, {self.WB}, v5
                 v_and_b32 v6, 1, v3
                 v_lshl_add_u32 v4, v6, 2, v4
                 v_lshlrev_b32 v4, 5, v4
                 v_and_b32 v6, 3, v1
                 s_mul_i32 s52, s29, {56 if att else 64}
                 v_lshl_add_u32 v7, v6, 3, s52
                 v_xor_b32 v8, v7, v4
                 v_add_u32 v{self.V_TR}, v8, v5
                 v_add_u32 v7, 32, v7""")
        if att: I(p, 'v_cmp_eq_u32 vcc, 3, v6\nv_mov_b32 v8, 224\nv_cndmask_b32 v7, v7, v8, vcc')
        I(p, f'v_xor_b32 v8, v7, v4\nv_add_u32 v{self.V_TR+1}, v8, v5')
        I(p, f'v_add_u32 v{self.V_TR+2}, 49152, v{self.V_TR}\nv_add_u32 v{self.V_TR+3}, 49152, v{self.V_TR+1}')
        if self.grp == 1:
            I(p, f"""v_and_b32 v4, 7, v1
                     v_lshlrev_b32 v4, 4, v4
                     v_add_u32 v4, {(self.NT-1)*2048 + 15*128}, v4
                     v_add_u32 v5, 65536, v4
                     v_mov_b32 v6, 0x3f803f80
                     v_mov_b32 v7, 0x3f803f80
                     v_mov_b32 v8, 0x3f803f80
                     v_mov_b32 v9, 0x3f803f80""")
            for xa in self.XS[:4]:
                I(p, f'ds_write_b128 v{4 + xa // 65536}, v[6:9] offset:{xa % 65536}', wr=[('tok_ones', 0)])
        I(p, f'v_mul_u32_u24 v4, {CH}, v3\nv_lshl_add_u32 v{V_ST}, v2, 4, v4')
        I(p, f's_mul_i32 s52, s29, {4*CH}\ns_add_u32 s46, s46, s52')
        I(p, f'v_lshlrev_b32 v{self.V_TABR}, {2 if att else 3}, v2')
        I(p, f's_lshl_b32 s52, s29, 8\ns_add_u32 s52, s52, {CSL}\nv_lshl_add_u32 v{self.V_CSA}, v3, 6, s52')
        I(p, 's_mov_b32 s62, 0x80008000\ns_mov_b32 s63, 0x80008000')
    def setup_s2(self):
        p = self.p
        ng = self.cfg.get('k2_rot', 7)
        def tab(N): return sum(((c % ng) * N // ng) << (4 * c) for c in range(7))
        cnt = self.cfg.get('host', [29] * 7 + [28]); assert sum(cnt) == 231
        cum = [sum(cnt[:i]) for i in range(8)]
        pk = lambda v: sum(x << (8 * i) for i, x in enumerate(v))
        GS(p, f"""s_mov_b32 s66, {pk(cum[:4])}
                 s_mov_b32 s67, {pk(cnt[:4])}
                 s_cmp_ge_u32 s56, 4
                 s_cselect_b32 s66, {pk(cum[4:])}, s66
                 s_cselect_b32 s67, {pk(cnt[4:])}, s67
                 s_lshl_b32 s47, s56, 3
                 s_lshr_b32 s66, s66, s47
                 s_lshr_b32 s67, s67, s47
                 s_and_b32 s47, s66, 255
                 s_and_b32 s77, s67, 255
                 s_add_u32 s47, s47, s57
                 s_mul_i32 s66, s47, 9363
                 s_lshr_b32 s66, s66, 16
                 s_mul_i32 s67, s66, 7
                 s_sub_u32 s67, s47, s67
                 s_cmp_ge_u32 s30, 6
                 s_cselect_b32 s68, s4, s8
                 s_cselect_b32 s69, s5, s9
                 s_cselect_b32 s70, s6, s10
                 s_cselect_b32 s75, 28, 32
                 s_cselect_b32 s73, 16, 19
                 s_cselect_b32 s74, 0, s32
                 s_mov_b32 s42, {tab(18)}
                 s_cselect_b32 s42, {tab(16)}, s42
                 s_cmp_ge_u32 s57, s77
                 s_cselect_b32 s70, 0, s70
                 s_mov_b32 s71, 0x20000
                 s_mul_i32 s75, s75, 896
                 s_mul_i32 s74, s74, {19*28672}
                 s_mul_i32 s73, s73, s75
                 s_add_u32 s73, s73, s74
                 s_lshl_b32 s72, s67, 2
                 s_lshr_b32 s42, s42, s72
                 s_and_b32 s42, s42, 15
                 s_mul_i32 s72, s42, s75
                 s_add_u32 s72, s72, s74
                 s_lshl_b32 s76, s30, 11""")
        I(p, """v_lshlrev_b32 v4, 1, v3
                v_and_b32 v5, 7, v1
                v_xor_b32 v4, v4, v5
                v_lshrrev_b32 v5, 3, v1
                v_mul_u32_u24 v6, 896, v5
                v_lshl_add_u32 v6, v4, 4, v6
                s_mul_i32 s47, s31, 14336
                s_lshl_b32 s52, s67, 7
                s_add_u32 s47, s47, s52
                v_add_u32 v11, s47, v6""")
        tr_setup(p, 4, RA, 6)
    def nonce(self, V):
        self.p.add(f'v_mov_b32 v{V}, 0', 'valu', [], [('v', V)])
        self.p.add(f'global_load_dwordx2 {vr(V,2)}, v{V}, s[60:61] sc1', 'vml', [('v', V), ('tok_ep', 0)] + R('s', 60, 2), R('v', V, 2), early=self.lastbar, dead=self.lastbar + 2)
    def st_load(self):
        p = self.p
        if self.att: return
        I(p, """s_lshl_b32 s37, s2, 3
                s_add_u32 s37, s37, s30
                s_mul_i32 s58, s37, 1792
                v_and_b32 v56, 31, v1
                v_cmp_gt_u32 vcc, 28, v56
                v_lshrrev_b32 v57, 5, v1
                v_mul_u32_u24 v57, 896, v57
                v_lshl_add_u32 v56, v56, 4, v57
                v_add_u32 v56, s58, v56
                v_cndmask_b32 v56, -512, v56, vcc""".replace('-512', 'v60'), dead=-930) if I(p, 'v_mov_b32 v60, 0x40000000', dead=-931) else None
        I(p, 'buffer_load_dwordx4 v[48:51], v56, s[12:15], 0 offen', rd=[('tok_ep', 0), ('m0', 0)], dead=-929)
        I(p, 'buffer_load_dwordx4 v[52:55], v56, s[12:15], 0 offen offset:448', rd=[('tok_ep', 0), ('m0', 0)], dead=-928)
    def st_compute(self):
        p = self.p; at = self.lastbar
        if self.att: return
        dots = 'v_mov_b32 v56, 0\n  v_mov_b32 v57, 0\n  s_mov_b32 s58, 0x3f803f80\n  ' + '\n  '.join(
            [f'v_dot2c_f32_bf16 v56, s58, v{48+i}\n  v_dot2c_f32_bf16 v57, v{48+i}, v{48+i}' for i in range(8)]) + '\n  s_nop 2'
        if self.cfg.get('st_c', 2) < 0:
            p.add(dots, 'pk', R('v', 48, 8) + [('tok_ep', 0)], R('v', 56, 2) + [('s', 58)], dead=-100)
        else:
            b = p.ops[self.ep0]; assert b.kind == 'bar'
            dots = dots.replace('s58', 's65')
            b.glue = ([], [Op(dots, 'pk', R('v', 48, 8), R('v', 56, 2) + [('s', 65)])])
            b.rd += R('v', 48, 8); b.wr += R('v', 56, 2) + [('s', 65)]
        I(p, f"""v_permlane16_swap_b32 v56, v57
                 v_add_f32 v52, v56, v57
                 v_add_f32_dpp v52, v52, v52 row_ror:8 row_mask:0xf bank_mask:0xf
                 v_add_f32_dpp v52, v52, v52 row_ror:4 row_mask:0xf bank_mask:0xf
                 v_add_f32_dpp v52, v52, v52 row_ror:2 row_mask:0xf bank_mask:0xf
                 v_add_f32_dpp v52, v52, v52 row_ror:1 row_mask:0xf bank_mask:0xf
                 v_mov_b32 v53, v52
                 v_permlane16_swap_b32 v52, v53
                 v_mul_f32 v52, {f32(1/448)}, v52
                 v_mul_f32 v54, v52, v52
                 v_mul_f32 v53, {f32(1/448)}, v53
                 v_sub_f32 v53, v53, v54
                 v_max_f32 v53, 0, v53
                 v_cvt_pk_bf16_f32 v54, -v52, v53
                 v_lshlrev_b32 v48, 16, v54
                 v_and_b32 v53, 0xffff0000, v54
                 v_add_f32 v53, {f32(1e-5)}, v53
                 v_cvt_pk_bf16_f32 v53, v53, v53
                 v_and_b32 v53, 0xffff0000, v53
                 v_sqrt_f32 v53, v53
                 v_cvt_pk_bf16_f32 v53, v53, v53
                 v_and_b32 v53, 0xffff0000, v53
                 v_rcp_f32 v50, v53
                 s_lshl_b32 s37, s37, 5
                 s_add_u32 s37, s37, {STO}
                 v_lshrrev_b32 v55, 1, v1
                 v_add_u32 v55, s37, v55
                 v_and_b32 v56, 31, v1
                 v_cmp_eq_u32 vcc, 0, v56
                 v_cndmask_b32 v55, -16, v55, vcc""")
    def st_publish(self):
        p = self.p; at = self.lastbar; tag = f's{int(self.att)}{self.grp}'
        p.add(nonce_check(tag, 58, 54), 'rfl', R('v', 58, 2) + R('s', 60, 2), R('v', 58, 2) + [('v', 54), ('vcc', 0), ('s', 65)], early=at + 1, dead=at + 2)
        if self.att: return
        I(p, 'v_mov_b32 v49, v58\nv_mov_b32 v51, v59')
        I(p, 'buffer_store_dwordx4 v[48:51], v55, s[24:27], 0 offen sc1', rd=[('tok_ep', 0), ('m0', 0)], early=at + 2, dead=at + 3)
    def st_fetch(self):
        p = self.p; at = self.lastbar
        I(p, f"""s_lshl_b32 s58, s29, 6
                 v_add_u32 v52, s58, v1
                 v_min_u32 v52, {126 if self.att else 190}, v52
                 v_lshlrev_b32 v{self.V_TABW}, {2 if self.att else 3}, v52
                 v_add_u32 v52, s33, v52
                 v_max_i32 v52, 0, v52
                 v_min_u32 v52, 2047, v52
                 v_lshlrev_b32 v52, 4, v52
                 v_add_u32 v52, {STO}, v52""")
        I(p, 'buffer_load_dwordx4 v[48:51], v52, s[24:27], 0 offen sc1', rd=[('tok_ep', 0), ('m0', 0)], early=at + 1, dead=at + 2)
    def st_table(self, VN):
        p = self.p; at = self.lastbar; tag = f't{int(self.att)}'
        SLOW.append(f"""L_q{tag}:
  s_mov_b32 s65, 0
L_qo{tag}:
  s_sleep 4
  buffer_load_dwordx4 v[48:51], v52, s[24:27], 0 offen sc1
  s_add_u32 s65, s65, 1
  s_waitcnt vmcnt(0)
  v_cmp_ne_u32 vcc, v49, v58
  v_cmp_ne_u32 s[48:49], v51, v59
  s_cmp_ge_u32 s65, 0x40000
  s_cbranch_scc1 L_r{tag}
  s_nop 1
  s_or_b64 vcc, vcc, s[48:49]
  s_cbranch_scc1 L_qo{tag}
  s_branch L_r{tag}
""")
        p.add(f"""v_cmp_ne_u32 vcc, v49, v58
  v_cmp_ne_u32 s[48:49], v51, v59
  s_nop 2
  s_or_b64 vcc, vcc, s[48:49]
  s_cbranch_scc1 L_q{tag}
L_r{tag}:""", 'rfl', R('v', 48, 5) + R('v', 58, 2), R('v', 48, 4) + [('vcc', 0), ('s', 65), ('s', 48), ('s', 49)], early=at + 1, dead=at + 2)
        if self.att:
            I(p, f'ds_write_b32 v{self.V_TABW}, v48', wr=[('tok_tw', 0)], dead=at + 4)
            I(p, f'ds_write_b32 v{self.V_TABW}, v50 offset:1024', wr=[('tok_tw', 0)], dead=at + 5)
        else:
            I(p, 'v_mul_f32 v49, v50, v50')
            I(p, f'ds_write_b64 v{self.V_TABW}, v[48:49]', wr=[('tok_tw', 0)], dead=at + 4)
        I(p, f'v_mov_b32 v{VN}, v58\nv_mov_b32 v{VN+1}, v59')
    def st_hooks(self, ks, VN):
        c = self.cfg
        if ks == c.get('st_c', 2): self.st_compute()
        if self.att and not self.grp: return
        if ks == (c.get('st_f', 9) if self.att else c.get('st_n', 3)): self.nonce(58)
        if ks == (c.get('st_t', 11) if self.att else c.get('st_p', 5)): self.st_publish()
        if self.grp:
            if ks == c.get('st_f', 9): self.st_fetch()
            if ks == c.get('st_t', 11): self.st_table(VN)
    def early_b(self, n, at):
        bdma(self.p, n, rd=[('tok_ep', 0)], early=at, dead=at + 1)
    def early_read(self, n):
        for ct in range(4):
            for e in range(2):
                I(self.p, f'ds_read_b64_tr_b16 {fr(n, 4*ct+2*e, 2)}, v{4+ct} offset:{e*2048}', rd=[('tok_ep', 0)], wr=[('tok_er', n)])
        self.pending_free.append((('tok_er', n), ('tok_ef', n)))
    def eb_hooks(self, ks, plan):
        if ks in (9, 12): self.early_read(0 if ks == 9 else 1)
        for q, n in enumerate({7: [0], 10: [1]}.get(ks, []) + plan.get(ks, [])):
            self.early_b(n, self.lastbar + 2 + 5 * q)
        if ks in (8, 11): self.pending_free.append((('tok_bd', 0 if ks == 8 else 1), ('tok_el', ks)))
    def pf_code(self):
        if self.cfg.get('p1', -1) == self.grp: self.p.add('s_setprio 1', 'salu', [], [], dead=-999)
        return
    def pf_tlb(self):
        if not self.cfg.get('tlb', 0): return
        p, V = self.p, self.V_PF
        I(p, f"""s_mov_b32 s27, 0x20000
                 s_mov_b32 s26, {WS_BYTES}
                 s_lshl_b32 s58, s57, 3
                 s_add_u32 s58, s58, s30
                 s_mul_i32 s59, s58, {(WS_BYTES // 255) & ~127}
                 s_min_u32 s59, s59, {WS_BYTES - 128}
                 v_mov_b32 v{V}, s59
                 s_mul_i32 s59, s58, 7168
                 v_mov_b32 v{V+1}, s59""")
        self.touch(V, 's[24:27]', dead=-940)
        p.add(f'global_load_dword v35, v{V+1}, s[72:73]', 'vml', [('v', V + 1), ('tok_ep', 0), ('m0', 0)] + R('s', 72, 2), [], dead=-939)
    def pf_setup(self):
        I(self.p, 's_mov_b32 s10, 1605632\ns_mov_b32 s11, 0x20000\ns_mov_b32 s6, 401408\ns_mov_b32 s7, 0x20000')
        if not self.att:
            I(self.p, 's_lshl_b32 s59, s2, 2\ns_add_u32 s59, s59, s29\ns_mov_b32 s98, 1204224\ns_mov_b32 s99, 0x20000' .replace('s98', 's70').replace('s99', 's71'))
    def lin(self, V, srd, base, nbytes, nw, idx, **kw):
        ST = self.cfg.get('pfst', 128); sh = ST.bit_length() - 1
        c = -(-nbytes // (ST * nw))
        assert c <= 64
        I(self.p, f's_mul_i32 s58, s{idx}, {c*ST}\ns_add_u32 s58, s58, {base}\nv_min_u32 v{V}, {c-1}, v1\nv_lshl_add_u32 v{V}, v{V}, {sh}, s58')
        self.touch(V, srd, **kw)
    def pf_phase(self, a, b, **kw):
        p, V, n = self.p, self.V_PF, b - a
        if self.att or not self.cfg.get('pf1', 1): return
        if self.cfg.get('pfw', 0): self.lin(V, 's[20:23]' if self.grp else 's[16:19]', a * 229376, n * 229376, 672, 59, **kw)
        if self.grp == 0: self.lin(V + 1, 's[68:71]', a * 172032, n * 172032, 672, 59, **kw)
        elif self.cfg.get('pfx', 1) == 0: pass
        elif self.cfg.get('xlin', 0):
            if not getattr(self, 'xdone', False): self.lin(V + 1, 's[12:15]', 0, 1835008, 672, 59, **kw); self.xdone = True
        else:
            I(p, f"""s_mul_i32 s58, s59, {4*896}
                     s_add_u32 s58, s58, {a*128}
                     v_min_u32 v{V+1}, {n-1}, v2
                     v_lshlrev_b32 v{V+1}, 7, v{V+1}
                     v_mad_u32_u24 v{V+1}, v3, s3, v{V+1}
                     v_add_u32 v{V+1}, s58, v{V+1}""")
            self.touch(V + 1, 's[12:15]', **kw)
    def pf_w2(self, **kw):
        V = self.V_PF
        if not self.cfg.get('pf1', 1): return
        if self.att != bool(self.cfg.get('pfCatt', 0)): return
        nw = 352 if self.att else 672
        if self.att: I(self.p, 's_sub_u32 s59, s2, 168\ns_lshl_b32 s59, s59, 2\ns_add_u32 s59, s59, s29')
        self.lin(V, 's[8:11]', 802816 * self.grp, 802816, nw, 59, **kw)
        if self.grp == 0: self.lin(V + 1, 's[4:7]', 0, 401408, nw, 59, **kw)
    def touch(self, V, srd, off=0, **kw):
        k, r, w, c = auto(f'buffer_load_dword v35, v{V}, {srd}, 0 offen')
        self.p.add(f'buffer_load_dword v35, v{V}, {srd}, 0 offen offset:{off}', 'vml', r + [('tok_ep', 0), ('m0', 0)], [], **kw)
    def prefetch_k2(self, piece):
        p, V = self.p, self.V_PF
        if not self.cfg.get('pf2', 1) or self.att: return
        if piece == 0:
            I(p, f"""s_lshl_b32 s59, s57, 3
                     s_add_u32 s59, s59, s30
                     s_mul_i32 s58, s59, {75*128}
                     s_mul_i32 s59, s59, {19*128}
                     v_min_u32 v{V}, 14, v1
                     v_lshl_add_u32 v{V}, v{V}, 7, s58
                     v_min_u32 v{V+1}, 18, v1
                     v_lshl_add_u32 v{V+1}, v{V+1}, 7, s59""")
        kw = dict(early=self.lastbar + 2, dead=self.lastbar + 4)
        if piece in (2, 4): I(p, f'v_add_u32 v{V}, 3840, v{V}')
        if piece < 5: self.touch(V, 's[8:11]', 1920 * (piece % 2), **kw)
        else: self.touch(V + 1, 's[4:7]', **kw)
    def q_w(self, ks, m):
        self.wmap[(ks, m)] = self.nimg
        self.dmaq.append(('w', ks, m, self.nimg)); self.nimg += 1
    def pump(self, limit=99, at=None, sp=4):
        p = self.p; k = 0
        if at is None: at = max(self.lastbar, 0) + 1 + (sp / 2.0) * self.grp
        while self.dmaq and k < limit:
            def free(d):
                if d[0] == 'x': return d[1] not in self.XPREV or ('tok_xfree', self.XPREV[d[1]]) in self.have
                return d[3] < self.NI or ('tok_wfree', d[3] - self.NI) in self.have
            if not free(self.dmaq[0]) and not self.rot and self.cfg.get('byp', 1):
                o = next((i for i, e in enumerate(self.dmaq) if e[0] != self.dmaq[0][0]), None)
                if o is not None and free(self.dmaq[o]): self.dmaq.insert(0, self.dmaq.pop(o))
            d = self.dmaq[0]
            kw = dict(early=at + sp * k, dead=at + sp * k + 1)
            if d[0] == 'x':
                _, j, n = d
                rd = []
                if j in self.XPREV:
                    tok = ('tok_xfree', self.XPREV[j])
                    if tok not in self.have: return
                    rd = [tok]
                I(p, f's_add_u32 m0, s41, {self.XS[j] + 8192*n - (0 if self.rot else 128*j)}')
                if n == self.NU - 1 and (self.grp == 1 or j == 0):
                    kw.update(pre=[mk('s_mov_b64 exec, s[44:45]')], post=[mk('s_mov_b64 exec, -1')], maybe=True)
                    rd = rd + R('s', 44, 2)
                I(p, f'buffer_load_dwordx4 v{self.V_OFFX}, s[12:15], s{34+n} offen offset:{0 if self.rot else 128*j} lds', rd=rd + [('tok_ep', 0)], wr=[('tok_xd', j, n)], **kw)
            else:
                _, ks, m, u = d
                rd = []
                if u >= self.NI:
                    tok = ('tok_wfree', u - self.NI)
                    if tok not in self.have: return
                    rd = [tok]
                off = 896 * m if self.att else 0
                srd = 's[16:19]' if (self.att or m == 0) else 's[20:23]'
                if ks % 2 == 0 and m == 0:
                    if not self.rot: I(p, f's_mov_b32 s64, {(ks//2)*64*self.pitch}')
                    elif ks == 0:
                        I(p, f's_mul_i32 s64, s28, {64*self.pitch}')
                    else:
                        G(p, f's_add_u32 s28, s28, 1\ns_cmp_eq_u32 s28, 7\ns_cselect_b32 s28, 0, s28\ns_mov_b32 s100, 128\ns_cselect_b32 s100, -768, s100\ns_mul_i32 s64, s28, {64*self.pitch}')
                        for n in range(self.NU): I(p, f's_add_u32 s{34+n}, s{34+n}, s100')
                I(p, f's_add_u32 m0, s41, {self.waddr(u) - off}')
                I(p, f'buffer_load_dwordx4 v{self.V_OFFW + (ks&1)}, {srd}, s64 offen offset:{off} lds', rd=rd + [('tok_ep', 0)], wr=[('tok_wd', u)], **kw)
            self.dmaq.pop(0); k += 1
    def barrier(self, xs=(), ws=(), rd=(), wr=(), look=8):
        rd, wr = list(rd), [('tok_bar', 0), ('tok_ep', 0)] + list(wr)
        for j in xs:
            rd += [('tok_xd', j, n) for n in range(self.NU)]; wr.append(('tok_xr', j))
        for (ks, m) in ws:
            u = self.wmap[(ks, m)]
            rd.append(('tok_wd', u)); wr.append(('tok_wr', u))
        for (a, b) in self.pending_free:
            rd.append(a); wr.append(b); self.have.add(b)
        self.pending_free = []
        self.retime(self.p.nm - look)
        self.lastbar = self.p.nm - look
        self.ep0 = len(self.p.ops)
        self.p.add('s_barrier', 'bar', rd, wr, early=self.p.nm - look, dead=self.p.nm - look + 2)
    ep0 = None
    def retime(self, nextbar):
        if self.ep0 is None or not self.cfg.get('retime', 1): return
        ops = [o for o in self.p.ops[self.ep0:] if o.kind in ('dma', 'vml', 'vms') and ('tok_ep', 0) in o.rd]
        if not ops: return
        lo = max(self.lastbar, 0); span = max(nextbar - lo - 1, 1)
        for i, o in enumerate(ops):
            o.early = lo + (i + (0.25 if self.grp == 0 else 0.75)) * span / len(ops)
            o.dead = o.early + 1
    def epoch(self, ks, look, xfree=None, plan=None):
        cfg = self.cfg
        if xfree is not None:
            for j in xfree: self.pending_free.append((('tok_xrd', j), ('tok_xfree', j)))
        self.barrier(xs=[ks // 2] if ks % 2 == 0 else [], ws=[(ks, m) for m in range(self.NM)],
                     rd=[('tok_ones', 0)] if (ks == 0 and self.grp) else [], look=look)
        if xfree is None and ks % 2 == 0 and 2 <= ks: self.pending_free.append((('tok_xrd', ks // 2 - 1), ('tok_xfree', ks // 2 - 1)))
        lb = max(self.lastbar, 0)
        self.eb_hooks(ks, plan)
        for (e, a, b) in cfg.get('pfs', [(-1, 1, 2), (0, 2, 4), (2, 4, 7)]):
            if e == ks: self.pf_phase(a, b, early=lb, dead=lb + 1)
        for (e, a, b) in cfg.get('pfsw', []):
            if e == ks and not self.att: self.lin(self.V_PF, 's[20:23]' if self.grp else 's[16:19]', a * 229376, (b - a) * 229376, 672, 59, early=lb, dead=lb + 1)
        if ks == cfg.get('pfC', 4): self.pf_w2(early=lb, dead=lb + 1)
        if ks == 6: self.setup_s2()
        if 0 <= ks - cfg.get('pf2_at', 4) < 6: self.prefetch_k2(ks - cfg.get('pf2_at', 4))
        lims = cfg.get('lims', [(5, 1), (9, 2), (7, 3)])
        lim, sp = lims[ks] if ks < len(lims) else (cfg.get('lim', 4), 3.5)
        self.pump(limit=lim, sp=sp * {(0, 0): 24, (0, 1): 20, (1, 0): 22, (1, 1): 18}[(int(self.att), self.grp)] / 24.0 * cfg.get('spk', 0.9))
    def wfrag(self, ks, m, base):
        u = self.wmap[(ks, m)]; off = self.waddr(u) - self.WB
        win = 1 if off >= 49152 else 0
        for s in range(2):
            for e in range(2):
                I(self.p, f'ds_read_b64_tr_b16 {ar(base+4*s+2*e,2)}, v{self.V_TR+2*win+s} offset:{off - 49152*win + e*1024}',
                  rd=[('tok_wr', u)], wr=[('tok_wrd', u)])
        self.pending_free.append((('tok_wrd', u), ('tok_wfree', u)))
    def xfrag(self, t, ks, stat=None):
        j, e = ks >> 1, ks & 1
        r = self.XR[self.xring % len(self.XR)]; self.xring += 1
        off = self.XS[j] + (t - self.t0) * 2048
        a = (self.V_XH if off >= 65536 else self.V_XB) + e; off %= 65536
        I(self.p, f'ds_read_b128 {r}, v{a} offset:{off}', rd=[('tok_xr', j)], wr=[('tok_xrd', j)])
        return r
    def masked(self, text, sreg, **kw):
        I(self.p, text, rd=R('s', sreg, 2) + list(kw.pop('rd', [])), pre=[mk(f's_mov_b64 exec, s[{sreg}:{sreg+1}]')], post=[mk('s_mov_b64 exec, -1')], **kw)

def gen_ffn(cfg, grp):
    k = S1(False, grp, cfg); p = k.p
    ACC, SACC, CS, TMP = 64, 36, 48, 164
    k.XR = [vr(r, 4) for r in ([36, 40, 44, 164, 168, 172] if grp == 0 else [144, 148, 152, 156, 168, 172])]
    STR = [160, 162, 24, 28, 30, 4]
    tiles = list(range(6)) if grp == 0 else [10, 6, 7, 8, 9]
    KT = cfg['KT']; LK = cfg.get('LK', 18)
    k.head()
    k.pf_code(); k.pf_tlb()
    if cfg.get('hs', 1): k.st_load()
    k.pf_setup()
    I(p, 's_mov_b32 s3, 896')
    for (e, a, b) in cfg.get('pfs', [(-1, 1, 2), (0, 2, 4), (2, 4, 7)]):
        if e == -1: k.pf_phase(a, b, dead=-900)
    if cfg.get('pfC', 4) == -1: k.pf_w2(dead=-890)
    k.pump(limit=cfg.get('first', 2), at=-800)
    k.setup_b(23)
    if cfg.get('st_c', 2) < 0: k.st_compute()
    def ab(t): return ACC + 16 * (t - 6 * grp)
    def wf(ks): return 16 * (ks % 3)
    def tile_mfma(t, ks):
        f = k.xfrag(t, ks)
        for s in range(4):
            d = vr(ab(t) + 4 * s, 4)
            mf(p, d, ar(wf(ks) + 4 * s, 4), f, d if ks else '0')
    per = 24 if grp == 0 else (20 if cfg.get('hs', 1) else 23)
    posu = [min(ks - min(LK, cfg.get('lk0', 99) + cfg.get('lk1', 3) * ks) / 24.0, KT - cfg.get('csearly', 0) - (cfg.get('lkend', 10) + (13 - ks) * cfg.get('ramp', 17)) / 24.0) for ks in range(14)]
    xfreed = set()
    def xf(pu):
        r = [j for j in range(6) if 2 * j + 2 <= pu and j not in xfreed]
        xfreed.update(r); return r
    assert KT == 12
    ce = cfg.get('csearly', 0)
    KE = KT - ce
    for ks in range(14):
        k.epoch(ks, p.nm - posu[ks] * per, xfree=xf(posu[ks]), plan={11: [2, 3], 12: [4], 13: [5, 6]})
        k.st_hooks(ks, 164)
        if ks == 7: assert 2 in xfreed
        if ks == 11: assert 4 in xfreed
        for m in range(2): k.wfrag(ks, m, wf(ks) + 8 * m)
        if ks < KE:
            for t in tiles: tile_mfma(t, ks)
    assert not k.dmaq
    def epi(t, n, pk):
        a = ab(t); st = STR[n]
        if pk:
            for i in range(0, 16, 2): I(p, f'v_pk_fma_f32 {vr(a+i,2)}, {vr(CS+i,2)}, {vr(st,2)}, {vr(a+i,2)} op_sel_hi:[1,0,1]')
            for i in range(0, 8, 2): I(p, f'v_pk_mul_f32 {vr(a+i,2)}, {vr(a+i,2)}, {vr(a+8+i,2)}')
            for i in range(0, 8, 2): I(p, f'v_pk_mul_f32 {vr(a+i,2)}, {vr(a+i,2)}, {vr(st,2)} op_sel:[0,1]')
        else:
            for i in range(16): I(p, f'v_fmac_f32 v{a+i}, v{CS+i}, v{st}')
            for i in range(8): I(p, f'v_mul_f32 v{a+i}, v{a+i}, v{a+8+i}')
            for i in range(8): I(p, f'v_mul_f32 v{a+i}, v{a+i}, v{st+1}')
        for i in range(4): I(p, f'v_cvt_pk_bf16_f32 v{a+8+i}, v{a+2*i}, v{a+2*i+1}')
        I(p, f'buffer_store_dwordx4 {vr(a+8,4)}, v{k.V_ST}, s[24:27], s46 offen offset:{256*t} {cfg["st_flags"]}', wr=[('tok_vq', 0)], dead=p.nm + 20 + 30 * n)
    nb = cfg.get('tab_after', 1)
    for j in xf(99): k.pending_free.append((('tok_xrd', j), ('tok_xfree', j)))
    def tab_reads():
        k.ep0 = None
        if cfg.get('thin', 1): p.dense_from = p.nm
        for q in range(4):
            I(p, f'ds_read_b128 {vr(CS+4*q,4)}, v{k.V_CSA} offset:{16*q}', rd=[('tok_tab', 0)], wr=[('tok_lr', 0)], dead=k.lastbar + 2)
        for q, tt in enumerate(tiles):
            I(p, f'ds_read_b64 {vr(STR[q],2)}, v{k.V_TABR} offset:{128*tt}', rd=[('tok_tab', 0)], wr=[('tok_lr', 0)], dead=k.lastbar + 3 + q)
        for q, n in enumerate(range(7, cfg['ne'])): k.early_b(n, k.lastbar + 1 + 4 * q)
    seq = [(t, ks) for ks in range(KE, KT) for t in tiles if t != 10] + [(t, ks) for t in tiles if t != 10 for ks in range(KT, 14)]
    if grp:
        for ks in range(KE, 14): tile_mfma(10, ks)
        for q in range(4):
            k.masked(f'ds_write_b128 v{k.V_CSA}, {vr(ab(10)+4*q,4)} offset:{16*q}', 62, wr=[('tok_tw', 0)], dead=p.nm + 3)
        k.barrier(rd=[('tok_tw', 0)], wr=[('tok_tab', 0)], look=-4)
        tab_reads()
    nbm = ((4 if cfg.get('hs', 1) else 7) * (14 - KE) + 4 + 3) // 4 + cfg.get('nbx', 0)
    for n, (t, ks) in enumerate(seq):
        if (not grp) and n == nbm:
            k.barrier(wr=[('tok_tab', 0)], look=0); tab_reads()
        tile_mfma(t, ks)
    npk = 0
    for n, t in enumerate(tiles): epi(t, n, n >= len(tiles) - npk)
    k.barrier(wr=[('tok_vq', 0)], rd=[('tok_xrd', 6), ('tok_xrd', 5), ('tok_lr', 0)] + [('tok_bd', n) for n in range(2 + cfg.get('s2_npre', 2))], look=-400)
    p.ops[-1].text = '; (end barrier is executed at the start of stage 2)'
    if grp: I(p, 'v_mov_b32 v28, v164\nv_mov_b32 v29, v165', rd=[('tok_ep', 0)])
    return k

def gen_att(cfg, grp):
    k = S1(True, grp, cfg); p = k.p
    ACC, SACC, CSQ, CSV, BIAS, MSK, KADR = 64, 36, 48, 46, 160, 172, 25
    V_ST, V_EX, V_NM4, V_CV = 44, 45, 8, 24
    k.XR = [vr(r, 4) for r in ([36, 40, 80, 84, 60, 56, 52] if grp == 0 else [36, 40, 136, 140, 144, 148])]
    tiles = [3, 0, 1, 2] if grp == 0 else [6, 5, 4]
    qt = [1, 2, 3] if grp == 0 else [6, 5, 4]
    tb = 0 if grp == 0 else 4
    def ka(t, s=0): return (ACC + 24 * (t - tb) + 4 * s) if t >= tb else 152
    def va(t, s=0): return ACC + 24 * (t - tb) + 8 + 4 * s
    def qa(t, s=0): return ACC + 24 * (t - tb) + 16 + 4 * s
    VPK = [qa(0), 36] if grp == 0 else [136, 144]
    def vp(s, t): return VPK[s] + 2 * (t - (0 if grp == 0 else 3))
    def wf(ks, m): return 24 * (ks % 2) + 8 * m
    LK = cfg.get('LKA', 16)
    if cfg.get('thin', 1): p.dense_from = 9999
    k.head()
    k.pf_code(); k.pf_tlb()
    if cfg.get('hs', 1): k.st_load()
    k.pf_setup()
    I(p, 's_mov_b32 s3, 896')
    for (e, a, b) in cfg.get('pfs', [(-1, 1, 2), (0, 2, 4), (2, 4, 7)]):
        if e == -1: k.pf_phase(a, b, dead=-900)
    if cfg.get('pfC', 4) == -1: k.pf_w2(dead=-890)
    k.pump(limit=cfg.get('first_a', 3), at=-800)
    k.setup_b(V_ST)
    I(p, 'v_lshlrev_b32 v4, 2, v3\nv_sub_u32 v4, v2, v4\nv_mov_b32 v5, 0xff800000')
    for r in range(4):
        I(p, f"""v_subrev_u32 v6, {r}, v4
                 v_and_b32 v7, 0x80000001, v6
                 v_cmp_eq_u32 vcc, 0, v7
                 v_cndmask_b32 v{BIAS+r}, v5, 0, vcc
                 v_cmp_eq_u32 vcc, 0x80000000, v7
                 v_cndmask_b32 v{BIAS+4+r}, v5, 0, vcc""")
        if grp == 0: I(p, f'v_cndmask_b32 v{BIAS+8+r}, v{BIAS+4+r}, v5, s[54:55]')
    I(p, """v_and_b32 v6, 1, v2
            v_cmp_eq_u32 vcc, 1, v6
            v_mov_b32 v7, 0xffff
            v_mov_b32 v8, 0xffff0000
            v_cndmask_b32 v7, v7, v8, vcc
            v_lshl_add_u32 v6, v3, 2, v6""")
    for b in range(2):
        I(p, f"""v_add_u32 v8, {2*b}, v6
                 v_cmp_gt_u32 vcc, v8, v2
                 v_cndmask_b32 v{MSK+b}, 0, v7, vcc
                 v_cndmask_b32 v{MSK+2+b}, v7, 0, vcc
                 v_subrev_u32 v9, 16, v8
                 v_cndmask_b32 v8, v8, v9, vcc
                 v_lshlrev_b32 v8, 2, v8
                 v_add_u32 v{KADR+b}, 1024, v8""")
    I(p, f"""v_lshlrev_b32 v{V_NM4}, 4, v3
             s_lshl_b32 s52, s29, 7
             s_add_u32 s52, s52, {CVL}
             v_lshl_add_u32 v{V_CV}, v2, 3, s52
             s_lshl_b32 s52, s29, 11
             s_add_u32 s52, s52, {LA + 14336}
             v_lshl_add_u32 v{V_EX}, v1, 4, s52
             s_mov_b32 s38, 0
             s_mov_b32 s39, 0xffff0000""")
    def m_kq(t, ks, f):
        for s in range(2):
            d = vr(ka(t, s), 4); mf(p, d, ar(wf(ks, 1) + 4 * s, 4), f, d if ks else '0')
        if t:
            for s in range(2):
                d = vr(qa(t, s), 4); mf(p, d, ar(wf(ks, 0) + 4 * s, 4), f, d if ks else '0')
    def m_v(t, ks, f):
        for s in range(2):
            d = vr(va(t, s), 4); mf(p, d, f, ar(wf(ks, 2) + 4 * s, 4), d if ks else '0')
    for ks in range(14):
        nl = cfg.get('att_loop', 4)
        k.epoch(ks, min(LK, cfg.get('lk0', 99) + cfg.get('lk1', 3) * ks), plan={e: [n for n in v if n < nl] for e, v in {11: [2], 12: [3, 4], 13: [5, 6, 7]}.items()})
        k.st_hooks(ks, 168)
        for m in (1, 0, 2): k.wfrag(ks, m, wf(ks, m))
        fs = {}
        for n, t in enumerate(tiles):
            fs[t] = k.xfrag(t, ks)
            m_kq(t, ks, fs[t])
            if ks < 13 or n == 0: m_v(t, ks, fs[t])
            if ks == 13 and n == 0 and grp:
                for q, r in enumerate((qa(6), qa(6, 1), ka(6), ka(6, 1))):
                    k.masked(f'ds_write_b128 v{k.V_CSA}, {vr(r,4)} offset:{16*q}', 62, wr=[('tok_tw', 0)], dead=p.nm + 3)
                for s in range(2):
                    k.masked(f'ds_write_b32 v{V_CV}, v{va(6,s)+3} offset:{4*s}', 38, wr=[('tok_tw', 0)], dead=p.nm + 4)
        if ks == 13:
            k.barrier(rd=([('tok_tw', 0)] if grp else []) + [('tok_xrd', 6), ('tok_xrd', 5)], wr=[('tok_tab', 0)], look=2 if grp else 4)
            for t in tiles[1:]: m_v(t, ks, fs[t])
    assert not k.dmaq
    for q in range(4): I(p, f'ds_read_b128 {vr(CSQ+4*q,4)}, v{k.V_CSA} offset:{16*q}', rd=[('tok_tab', 0)], wr=[('tok_lr', 0)], dead=k.lastbar + 1)
    CSVP = [CSV, 22]
    for s in range(2): I(p, f'ds_read2_b32 {vr(CSVP[s],2)}, v{V_CV} offset0:{s} offset1:{s}', rd=[('tok_tab', 0)], wr=[('tok_lr', 0)], dead=k.lastbar + 1)
    NMR = [4, 6, 14, 20]; NM4 = [16, 28, 32, 16]
    ebq = []
    def eb1():
        if ebq:
            n = ebq.pop(0); bdma(p, n, rd=[('tok_tab', 0)])
    def fix(base, cs, nm):
        for i in range(0, 8, 2): I(p, f'v_pk_fma_f32 {vr(base+i,2)}, {vr(cs+i,2)}, {vr(nm,2)}, {vr(base+i,2)}')
        for i in range(4): I(p, f'v_cvt_pk_bf16_f32 v{base+i}, v{base+2*i}, v{base+2*i+1}')
    def fix_v(t, n):
        nm = NM4[n]
        for s in range(2):
            a = va(t, s)
            for i in (0, 2): I(p, f'v_pk_fma_f32 {vr(a+i,2)}, {vr(nm+i,2)}, {vr(CSVP[s],2)}, {vr(a+i,2)}')
            for i in range(2): I(p, f'v_cvt_pk_bf16_f32 v{vp(s,t)+i}, v{a+2*i}, v{a+2*i+1}')
    for n, t in enumerate(tiles):
        I(p, f'ds_read2_b32 {vr(NMR[n],2)}, v{k.V_TABR} offset0:{16*t} offset1:{16*t}', rd=[('tok_tab', 0)], wr=[('tok_lr', 0)], dead=k.lastbar + 1)
    def rd_nm4(n): I(p, f'ds_read_b128 {vr(NM4[n],4)}, v{V_NM4} offset:{64*tiles[n]}', rd=[('tok_tab', 0)], wr=[('tok_lr', 0)], dead=k.lastbar + 2)
    rd_nm4(0); rd_nm4(1)
    p.tail_fixed = len(p.ops)
    for n, t in enumerate(tiles):
        fix(ka(t), CSQ + 8, NMR[n])
        if n == 0:
            fix_v(t, 0)
            if grp == 0:
                I(p, f'ds_write_b128 v{V_EX}, {vr(ka(3),4)}', rd=[('tok_tab', 0)], wr=[('tok_ex', 0)])
                for s in range(2): I(p, f'ds_write_b64 v{V_EX}, {vr(vp(s,3),2)} offset:{1024 + 8*s}', rd=[('tok_tab', 0)], wr=[('tok_ex', 0)])
        if t: fix(qa(t), CSQ, NMR[n])
        eb1()
    k.barrier(rd=[('tok_ex', 0)] if grp == 0 else R('v', qa(4), 4), wr=[('tok_exr', 0)], look=0)
    if grp:
        I(p, f'ds_read_b128 {vr(ka(3),4)}, v{V_EX}', rd=[('tok_exr', 0)], wr=[('tok_lr', 0)])
        for s in range(2): I(p, f'ds_read_b64 {vr(vp(s,3),2)}, v{V_EX} offset:{1024 + 8*s}', rd=[('tok_exr', 0)], wr=[('tok_lr', 0)])
    for n, t in enumerate(qt):
        T = CSQ + 5 * n
        I(p, f'ds_read_b32 v{T}, v{k.V_TABR} offset:{1024+64*t}', rd=[('tok_tab', 0)], wr=[('tok_lr', 0)])
        for b in range(2): I(p, f'ds_read_b32 v{T+1+b}, v{KADR+b} offset:{64*t}', rd=[('tok_tab', 0)], wr=[('tok_lr', 0)])
    for n in range(2, len(tiles)): rd_nm4(n)
    for t in qt:
        mf(p, vr(qa(t, 1), 4), vr(ka(t), 4), vr(qa(t), 4), vr(BIAS, 4))
        mf(p, vr(ka(t, 1), 4), vr(ka(t - 1), 4), vr(qa(t), 4), vr(BIAS + (8 if t == 1 else 4), 4))
    for n, t in enumerate(tiles[1:]): fix_v(t, n + 1); eb1()
    SC = 0.18898223650461362 * 1.4426950408889634
    def softmax(t, n):
        a, b, T = qa(t, 1), ka(t, 1), CSQ + 5 * n
        return f"""v_mul_f32 v{T}, {f32(SC)}, v{T}
                 v_mul_f32 v{T+3}, v{T}, v{T+1}
                 v_mul_f32 v{T+4}, v{T}, v{T+2}
                 v_max3_f32 v{a}, v{a}, v{a+1}, v{b}
                 v_max3_f32 v{a+2}, v{a+2}, v{a+3}, v{b+2}
                 v_max_f32 v{a}, v{a}, v{b+1}
                 v_max_f32 v{a+2}, v{a+2}, v{b+3}
                 v_mul_f32 v{a}, v{a}, v{T+3}
                 v_mul_f32 v{a+2}, v{a+2}, v{T+4}
                 v_max_f32 v{a+1}, v{a}, v{a+2}
                 v_max_f32 v{a+3}, v{a}, v{a+2}
                 v_permlane32_swap_b32 v{a+1}, v{a+3}
                 v_max_f32 v{b}, v{a+1}, v{a+3}
                 v_max_f32 v{b+1}, v{a+1}, v{a+3}
                 v_permlane16_swap_b32 v{b}, v{b+1}
                 v_max_f32 v{b}, v{b}, v{b+1}
                 v_sub_f32 v{a}, v{a}, v{b}
                 v_sub_f32 v{a+2}, v{a+2}, v{b}
                 v_exp_f32 v{a}, v{a}
                 v_exp_f32 v{a+2}, v{a+2}
                 v_add_f32 v{a+1}, v{a}, v{a+2}
                 v_add_f32 v{a+3}, v{a}, v{a+2}
                 v_permlane32_swap_b32 v{a+1}, v{a+3}
                 v_mul_f32 v{a}, v{a}, v{T+1}
                 v_mul_f32 v{a+2}, v{a+2}, v{T+2}
                 v_add_f32 v{b}, v{a+1}, v{a+3}
                 v_add_f32 v{b+1}, v{a+1}, v{a+3}
                 v_permlane16_swap_b32 v{b}, v{b+1}
                 v_add_f32 v{b}, v{b}, v{b+1}
                 v_rcp_f32 v{b}, v{b}
                 v_mul_f32 v{a}, v{a}, v{b}
                 v_mul_f32 v{a+2}, v{a+2}, v{b}
                 v_cvt_pk_bf16_f32 v{b+2}, v{a}, v{a}
                 v_cvt_pk_bf16_f32 v{b+3}, v{a+2}, v{a+2}
                 v_and_b32 v{a}, v{b+2}, v{MSK}
                 v_and_b32 v{a+1}, v{b+3}, v{MSK+1}
                 v_and_b32 v{a+2}, v{b+2}, v{MSK+2}
                 v_and_b32 v{a+3}, v{b+3}, v{MSK+3}""".split('\n')
    L = [softmax(t, n) for n, t in enumerate(qt)]
    for i in range(len(L[0])):
        for q in range(3): I(p, L[q][i])
        if i % 12 == 5: eb1()
    tail = p.ops[p.tail_fixed:]; p.ops = p.ops[:p.tail_fixed]
    m0 = len(p.ops)
    for n in range(cfg.get('att_loop', 4), cfg['ne']): bdma(p, n, rd=[('tok_tab', 0)])
    bops = p.ops[m0:]; p.ops = p.ops[:m0]
    units, cur = [], []
    for o in bops:
        cur.append(o)
        if o.kind == 'dma': units.append(cur); cur = []
    units[-1] += cur
    step = len(tail) * cfg.get('att_sp', 0.9) / len(units)
    nxt = 0.0
    for i, o in enumerate(tail):
        if units and i >= nxt:
            u = units.pop(0); p.ops += u; nxt += step
        p.ops.append(o)
    for u in units: p.ops += u
    for i, o in enumerate(p.ops): o.idx = i
    for t in qt:
        for s in range(2): mf(p, vr(va(t, s), 4), vr(vp(s, t - 1), 4), vr(qa(t, 1), 4), '0')
    for t in qt:
        a, d = va(t), qa(t)
        for i in range(4): I(p, f'v_cvt_pk_bf16_f32 v{d+i}, v{a+2*i}, v{a+2*i+1}')
        I(p, f'buffer_store_dwordx4 {vr(d,4)}, v{V_ST}, s[24:27], s46 offen offset:{256*(t-1)} {cfg["st_flags"]}', wr=[('tok_vq', 0)])
    k.barrier(wr=[('tok_vq', 0)], rd=[('tok_lr', 0)] + [('tok_bd', n) for n in range(2 + cfg.get('s2_npre', 2))], look=-99)
    p.ops[-1].text = '; (end barrier is executed at the start of stage 2)'
    if grp: I(p, 'v_mov_b32 v28, v168\nv_mov_b32 v29, v169')
    return k

FULL = [1]
def flag_off():
    if FULL[0]:
        return """v_lshl_add_u32 v7, v1, 3, s101
  v_cmp_gt_u32 vcc, 16, v1
  s_nop 1
  v_cndmask_b32 v7, -16, v7, vcc"""
    return """v_mov_b32 v7, s101
  v_cmp_eq_u32 vcc, 0, v1
  s_nop 1
  v_cndmask_b32 v7, -16, v7, vcc"""
SLOW = []
def nonce_check(tag, V=28, Z=6):
    SLOW.append(f"""L_pn{tag}:
  s_mov_b32 s65, 0
L_po{tag}:
  v_mov_b32 v{Z}, 0
  s_sleep 4
  global_load_dwordx2 v[{V}:{V+1}], v{Z}, s[60:61] sc1
  s_add_u32 s65, s65, 1
  s_waitcnt vmcnt(0)
  v_cmp_ne_u32 vcc, 0, v{V}
  s_cmp_ge_u32 s65, 0x40000
  s_cbranch_scc1 L_ps{tag}
  s_nop 3
  s_cbranch_vccz L_po{tag}
  s_branch L_ps{tag}
""")
    return f"""v_cmp_ne_u32 vcc, 0, v{V}
  s_nop 4
  s_cbranch_vccz L_pn{tag}
L_ps{tag}:"""
PUB = 'buffer_store_dwordx2 v[28:29], v7, s[24:27], 0 offen sc1'

def gen_s2(cfg, sg):
    p = Prog(vm_lat=cfg.get('s2_lat', 900), gap=cfg.get('s2_gap', 24))
    N = 16 if sg else 19
    ACC, NB, AD = 32, 10, 3
    AR = [vr(176 - 8 * AD + 4 * i, 4) for i in range(2 * AD)]
    def win(n):
        off = rowaddr(ROWSEQ[n]) - LA
        w = 0 if off < 55296 else (1 if off < 55296 + 65536 else 2)
        return w, off - (0, 55296, 120832)[w]
    def fread(n, tok, **kw):
        w, off = win(n)
        for ct in range(4):
            for e in range(2):
                I(p, f'ds_read_b64_tr_b16 {fr(n, 4*ct+2*e, 2)}, v{16+4*w+ct} offset:{off + e*2048}', rd=[tok], wr=[('tok_rd', n)], **kw)
    def bar(name, rd=(), **kw):
        p.add('s_barrier', 'bar', list(rd), [('tok_bar', 0), ('tok_b', name), ('tok_vq', 0)], **kw)
        return ('tok_b', name)
    def bd(n, rd=()): bdma(p, n, rd=rd)
    t0 = ('tok_b', 'entry')
    p.add('; (stage-1 stores outstanding)', 'vms', [], [('tok_ack', 0), ('tok_vq', 0)])
    ne = cfg['ne']
    if 'p1' in cfg and not sg: p.add('s_setprio 0', 'salu', [], [])
    tr_setup(p, 16, LA, 4)
    for w, o in ((1, 55296), (2, 120832)):
        for ct in range(4): I(p, f'v_add_u32 v{16+4*w+ct}, {o}, v{16+ct}')
    if sg: p.add('s_setprio 3', 'salu', [], [])
    if sg: p.add(flag_off(), 'valu', [('v', 1)], [('v', 7), ('vcc', 0)])
    I(p, f's_lshl_b32 s47, s30, 2\ns_add_u32 s47, s47, {PFL}\nv_mov_b32 v30, s47\nv_mov_b32 v31, 0\nv_xor_b32 v0, 4, v30')
    def publish(bp):
        if sg: p.add(nonce_check('a') + '\n  s_cmp_lg_u32 s30, 6\n  s_cbranch_scc1 L_pea\n  ' + PUB + '\nL_pea:', 'salu', [bp, ('s', 30)] + R('v', 6, 2) + R('v', 28, 2), R('v', 6, 1) + R('v', 28, 2) + [('tok_vq', 0), ('tok_nonce', 0), ('vcc', 0)])
    be = bar('entry', [('tok_ack', 0)] if cfg.get('pe', 1) else [])
    if cfg.get('pe', 1): publish(be)
    for n in range(ne, 11): bd(n)
    mid = 0
    npre = cfg.get('s2_npre', 2)
    for n in range(2, 2 + mid): fread(n, t0)
    if mid:
        bm = bar('m', [('tok_rd', n) for n in range(2, 2 + mid)])
        for n in range(11, 11 + mid): bd(n, [bm])
    for n in range(2, 2 + npre): fread(n, t0)
    mark0 = len(p.ops)
    VXO, VAO, XR = 13, 144, 4
    I(p, f"""s_lshl_b32 s45, s66, 1
            s_add_u32 s45, s45, s31
            s_lshl_b32 s45, s45, 5
            s_lshl_b32 s47, s32, 5
            s_lshl_b32 s46, s67, 7
            s_add_u32 s46, s46, s47
            v_mul_u32_u24 v40, {CH}, v3
            s_mov_b32 s47, 47663
            s_mov_b32 s52, 44621""")
    for t in range(2):
        I(p, f"""v_add_u32 v44, s45, v2
                 v_add_u32 v44, {16*t}, v44
                 v_mul_lo_u32 v45, v44, s47
                 v_lshrrev_b32 v45, 23, v45
                 v_mul_u32_u24 v46, 176, v45
                 v_sub_u32 v46, v44, v46
                 v_mul_u32_u24 v41, 171, v45
                 v_min_u32 v42, 1873, v41
                 v_add_u32 v42, v42, v46
                 v_sub_u32 v41, v42, v41
                 v_cmp_gt_u32 vcc, 171, v41
                 v_mul_u32_u24 v41, 896, v42
                 v_lshl_add_u32 v41, v3, 3, v41
                 v_add_u32 v41, s46, v41
                 v_cndmask_b32 v{VXO+t}, -16, v41, vcc""")
        if sg:
            I(p, """v_min_u32 v42, 2047, v42
                    v_mul_lo_u32 v45, v42, s52
                    v_lshrrev_b32 v45, 22, v45
                    v_mul_u32_u24 v46, 94, v45
                    v_min_u32 v46, 1953, v46
                    v_sub_u32 v42, v42, v46
                    v_mul_u32_u24 v45, 96, v45
                    v_add_u32 v44, v42, v45""")
        I(p, f'v_lshl_add_u32 v{VAO+t}, v44, 4, v40')
    I(p, f"""s_mul_i32 s53, s32, {0 if sg else 19*4*CH}
            s_add_u32 s53, s53, {0 if sg else 64*CH}
            s_add_u32 s54, s53, {N*4*CH}
            s_mul_i32 s55, s42, {4*CH}
            s_add_u32 s55, s55, s53
            s_mov_b32 s18, 1835008
            s_mov_b32 s19, 0x20000
            s_mov_b32 s20, s24
            s_mov_b32 s21, s25
            s_mov_b32 s22, {AH_BYTES}
            s_mov_b32 s23, 0x20000""")
    if sg:
        mark1 = len(p.ops)
        G(p, """s_lshl_b32 s47, s66, 6
                s_mul_i32 s48, s47, 47663
                s_lshr_b32 s48, s48, 23
                s_mul_i32 s59, s48, 5
                s_cmp_eq_u32 s48, 11
                s_cselect_b32 s59, 63, s59
                s_sub_u32 s59, s47, s59
                s_mul_i32 s50, s59, 44621
                s_lshr_b32 s50, s50, 22
                s_add_u32 s47, s47, 63
                s_mul_i32 s49, s47, 47663
                s_lshr_b32 s49, s49, 23
                s_mul_i32 s59, s49, 5
                s_cmp_eq_u32 s49, 11
                s_cselect_b32 s59, 63, s59
                s_sub_u32 s59, s47, s59
                s_min_u32 s59, s59, 2047
                s_mul_i32 s51, s59, 44621
                s_lshr_b32 s51, s51, 22
                s_mul_i32 s48, s48, 14
                s_mul_i32 s49, s49, 14
                s_sub_u32 s49, s49, 14
                s_lshl_b32 s50, s50, 2
                s_add_u32 s50, s50, 140
                s_lshl_b32 s51, s51, 2
                s_add_u32 s51, s51, 136""")
        I(p, f"""v_min_u32 v47, 35, v1
                 v_mov_b32 v15, s48
                 v_mov_b32 v48, s49
                 v_cmp_le_u32 vcc, 14, v47
                 v_cndmask_b32 v15, v15, v48, vcc
                 v_mov_b32 v48, s50
                 v_cmp_le_u32 vcc, 28, v47
                 v_cndmask_b32 v15, v15, v48, vcc
                 v_mov_b32 v48, s51
                 v_cmp_le_u32 vcc, 32, v47
                 v_cndmask_b32 v15, v15, v48, vcc
                 v_add_u32 v15, v15, v47
                 v_lshlrev_b32 v15, 7, v15
                 v_add_u32 v15, {FLG}, v15
                 s_mov_b32 s48, 0x0fffffff
                 s_mov_b32 s49, 0
                 s_mov_b32 s50, 0xf0000000
                 s_mov_b32 s51, 15""")
    late_setup = p.ops[mark0:]; p.ops = p.ops[:mark0]
    nfl = 0
    if sg:
        nfl = len(late_setup) - (mark1 - mark0)
        late_setup = late_setup[mark1 - mark0:] + late_setup[:mark1 - mark0]
    def drip(k):
        for _ in range(k):
            if late_setup:
                o = late_setup.pop(0); o.idx = len(p.ops); p.ops.append(o)
    VW = 0
    I(p, 'ds_write_b32 v30, v31 offset:64', wr=[('tok_pfz', 0)])
    def poll(tag, mask, first):
        ld = 'buffer_load_dwordx2 v[4:5], v15, s[24:27], 0 offen ' + cfg.get('poll_fl', 'sc1') + '\n  s_waitcnt vmcnt(0)\n  '
        txt = f"""s_mov_b32 s65, 0
  {ld if first else ''}
L_pl{tag}:
  v_cmp_ne_u64 vcc, v[4:5], v[28:29]
  s_add_u32 s65, s65, 1
  s_cmp_ge_u32 s65, 0x40000
  s_cbranch_scc1 L_pd{tag}
  s_nop 1
  s_and_b64 vcc, vcc, s[{mask}:{mask+1}]
  s_cbranch_scc0 L_pd{tag}
  s_sleep {cfg.get('poll_sleep', 3)}
  {ld}s_branch L_pl{tag}
L_pd{tag}:"""
        p.add(txt, 'salu', [('v', 15), ('v', 28), ('v', 29), ('v', 4), ('v', 5), ('tok_nonce', 0)] + R('s', mask, 2),
              [('v', 4), ('v', 5), ('vcc', 0), ('tok_poll', tag), ('tok_vq', 0)])
        return ('tok_poll', tag)
    bp = bar('p', [('tok_ack', 0), ('tok_pfz', 0)] + [('tok_rd', n) for n in range(2, 2 + npre)])
    if not cfg.get('pe', 1): publish(bp)
    p.add('s_waitcnt lgkmcnt(0)', 'salu', [bp], R('s', 16, 2))
    def pflag(val, tag, **kw):
        p.add(f"""L_pf{tag}{sg}:
  v_readfirstlane_b32 s64, v31
  s_nop 1
  s_cmp_ge_u32 s64, {val}
  s_cbranch_scc1 L_pfd{tag}{sg}
  ds_read_b32 v31, v30 offset:64
  s_waitcnt lgkmcnt(0)
  s_branch L_pf{tag}{sg}
L_pfd{tag}{sg}:""", 'rfl', [('v', 30), ('v', 31)], [('v', 31), ('s', 64), ('tok_pfo', tag), ('tok_vq', 0)], **kw)
        return ('tok_pfo', tag)
    VV = 146
    def setf(val, rd, **kw):
        I(p, f'v_mov_b32 v{VV}, {val}')
        I(p, f'ds_write_b32 v{VW}, v{VV} offset:64', rd=rd, wr=[('tok_pfz', 0), ('tok_vq', 0)], **kw)
    def getf(**kw): I(p, 'ds_read_b32 v31, v30 offset:64', rd=[('tok_pfz', 0)], wr=[('tok_vq', 0)], **kw)
    quick = 1
    rq = list(range(2 + npre, ne))
    first = list(range(11, min(N, 11 + npre)))
    for n in first:
        bd(n, [bp])
        for _ in range(-(-len(rq) // max(1, len(first)))  if n != first[-1] else 99):
            if rq and (len(rq) > 0): fread(rq.pop(0), t0)
            if n != first[-1] and _ >= 1: break
    while rq: fread(rq.pop(0), t0)
    pq = cfg.get('pq', 0)
    if sg and pq: drip(nfl)
    b2 = bar('r', [('tok_rd', n) for n in range(2 + npre, ne)] + [('tok_bd', n) for n in range(ne, 10)])
    for n in range(ne, 10): fread(n, b2)
    rest = list(range(11 + npre, min(N, 9 + ne)))
    post = list(range(9 + ne, N))
    per = (len(late_setup) + len(rest) - 1) // max(1, len(rest))
    if sg:
        drip({0: 999, 1: 0, 2: 30}[pq])
        I(p, 'buffer_load_dwordx2 v[4:5], v15, s[24:27], 0 offen sc1', rd=[('tok_nonce', 0)], wr=[('tok_vq', 0)])
    for n in rest:
        bd(n, [b2]); drip(per)
    drip(999)
    bgo = bar(4, ([poll(0, 48, not quick)] if sg else []) + [('tok_rd', n) for n in range(ne, 10)])
    go = poll(1, 50, False) if sg else bgo
    if sg: p.add('s_setprio 0', 'salu', [], [])
    if cfg.get('prio'):
        if sg: p.add('s_setprio 3', 'salu', [], [])
        else: p.add(f's_cmp_eq_u32 s32, 0\n  s_cbranch_scc1 L_np\n  s_setprio 1\n  s_cmp_eq_u32 s32, 1\n  s_cbranch_scc1 L_np\n  s_setprio 2\nL_np:' if cfg['prio'] == 2 else 's_nop 0', 'salu', [], [])
    p.fixed = len(p.ops)
    def aload(n):
        for t in range(2):
            I(p, f'v_add_u32 v{8+2*t}, s55, v{VAO+t}', rd=[go])
            I(p, f'buffer_load_dwordx4 {AR[(2*n+t) % (2*AD)]}, v{8+2*t}, s[20:23], 0 offen sc1', rd=[go], wr=[('tok_vq', 0)], dead=(n - AD) * 8 + 4 * t + 5)
        G(p, f's_add_u32 s55, s55, {4*CH}\ns_cmp_eq_u32 s55, s54\ns_cselect_b32 s55, s53, s55')
    for n in range(AD): aload(n)
    for n in range(N):
        if n == 3:
            for t in range(2):
                I(p, f'buffer_load_dwordx2 {vr(XR+2*t,2)}, v{VXO+t}, s[12:15], 0 offen', wr=[('tok_vq', 0)], dead=p.nm + 2)
        if quick:
            if post and n < 3: bdma(p, post.pop(0), rd=[bgo], early=p.nm, dead=p.nm + 1)
            nl = 0 if ne == 10 else 5
            if n == nl: setf(3, [('tok_bd', q) for q in range(NB, N)], early=p.nm - 1, dead=p.nm + 0.5)
            if n == nl + 1: getf(early=p.nm - 2, dead=p.nm)
            if n == nl + 2:
                land = pflag(3, 'l', early=p.nm - 3, dead=p.nm - 1)
                for q in range(NB, min(N, NB + nl + 2)): fread(q, land, dead=min(p.nm + 10 + 4 * (q - NB), 8 * q - 8))
        if n == 11: setf(4, [('tok_rd', q) for q in range(NB, NB + 3)], early=p.nm, dead=p.nm + 2)
        if n == N - 2: getf(early=p.nm, dead=p.nm + 2)
        for t in range(2):
            for ct in range(4):
                d = vr(ACC + 16 * t + 4 * ct, 4)
                mf(p, d, fr(n, 4 * ct, 4), AR[(2 * n + t) % (2 * AD)], d if n else '0')
        if n + AD < N: aload(n + AD)
        if n + NB < N and n >= nl + 2: fread(n + NB, land if quick else bgo, dead=p.nm + 10)
    I(p, f"""s_lshl_b32 s47, s31, 11
            v_lshl_add_u32 v12, v1, 4, s47
            v_lshl_add_u32 v16, v1, 4, s76""")
    fre = pflag(4, 'c', early=p.nm - 6)
    for c in range(1, 4):
        for t in range(2):
            I(p, f'ds_write_b128 v16, {vr(ACC+16*t+4*c,4)} offset:{rowaddr(ROWSEQ[9+c]) + 1024*t}', rd=[fre], wr=[('tok_xw', 0)])
    XU, E, RX = 64, 72, 80
    for i in range(4):
        I(p, f'v_lshlrev_b32 v{XU+2*i}, 16, v{XR+i}\nv_and_b32 v{XU+2*i+1}, 0xffff0000, v{XR+i}')
    def saddr(src, c): return rowaddr(ROWSEQ[9 + c]) + src * 4096
    if sg:
        for q in range(3): I(p, f'v_add_u32 v{17+q}, {saddr(q, q ^ 3)}, v12')
    else:
        tab = [[saddr(src, src ^ kq) for src in ((kq + 1) % 3, (kq + 2) % 3, 3)] for kq in range(3)]
        for q in range(3):
            G(p, f"""s_mov_b32 s{48+q}, {tab[0][q]}
                     s_cmp_eq_u32 s32, 1
                     s_cselect_b32 s{48+q}, {tab[1][q]}, s{48+q}
                     s_cmp_eq_u32 s32, 2
                     s_cselect_b32 s{48+q}, {tab[2][q]}, s{48+q}""")
            I(p, f'v_add_u32 v{17+q}, s{48+q}, v12')
    b6 = bar(6, [('tok_xw', 0)], early=1e6)
    own = [ACC, ACC + 2, ACC + 16, ACC + 18]
    for q in range(3):
        for t in range(2): I(p, f'ds_read_b128 {vr(RX+8*q+4*t,4)}, v{17+q} offset:{1024*t}', rd=[b6])
    if sg:
        for i in range(0, 8, 2): I(p, f'v_pk_add_f32 {vr(RX+i,2)}, {vr(RX+i,2)}, {vr(RX+8+i,2)}')
        for i in range(0, 8, 2): I(p, f'v_pk_add_f32 {vr(RX+i,2)}, {vr(RX+i,2)}, {vr(RX+16+i,2)}')
        S = own
    else:
        for i in range(0, 8, 2): I(p, f'v_pk_add_f32 {vr(RX+i,2)}, {vr(RX+i,2)}, {vr(own[i//2],2)}')
        for i in range(0, 8, 2): I(p, f'v_pk_add_f32 {vr(RX+i,2)}, {vr(RX+i,2)}, {vr(RX+8+i,2)}')
        S = [RX + 16 + i for i in range(0, 8, 2)]
    for i in range(8): I(p, f'v_mul_f32 v{E+i}, {f32(-1.4426950408889634)}, v{RX+i}')
    for i in range(8): I(p, f'v_exp_f32 v{E+i}, v{E+i}')
    for i in range(0, 8, 2): I(p, f'v_pk_mul_f32 {vr(RX+i,2)}, {vr(RX+i,2)}, {vr(S[i//2],2)}')
    for i in range(8): I(p, f'v_add_f32 v{E+i}, 1.0, v{E+i}')
    for i in range(8): I(p, f'v_rcp_f32 v{E+i}, v{E+i}')
    for i in range(0, 8, 2): I(p, f'v_pk_fma_f32 {vr(XU+i,2)}, {vr(RX+i,2)}, {vr(E+i,2)}, {vr(XU+i,2)}')
    for i in range(4): I(p, f'v_cvt_pk_bf16_f32 v{XR+i}, v{XU+2*i}, v{XU+2*i+1}')
    for t in range(2):
        I(p, f'buffer_store_dwordx2 {vr(XR+2*t,2)}, v{VXO+t}, s[16:19], 0 offen {cfg.get("ofl", "")}')
    class K: pass
    k = K(); k.p = p
    return k

def stamp(cfg, region, drain):
    if not cfg['stamp']: return ''
    mv = ''.join(f'  v_mov_b32 v{44+i}, s{82+2*i}\n' for i in range(9))
    return f'''  s_nop 7
{'  s_waitcnt vmcnt(0)' if drain else ''}
  s_memtime s[20:21]
  s_memrealtime s[22:23]
  s_waitcnt lgkmcnt(0)
  s_sub_u32 s20, s20, s78
  s_mov_b32 s16, s24
  s_mov_b32 s17, s25
  s_mov_b32 s18, 0x10000000
  s_mov_b32 s19, 0x20000
  s_lshl_b32 s3, s2, 3
  s_add_u32 s3, s3, s30
  s_lshl_b32 s3, s3, 6
  s_add_u32 s3, s3, {region}
  v_mov_b32 v40, s20
  v_mov_b32 v41, s80
  v_mov_b32 v42, s22
  v_mov_b32 v43, s78
  v_mov_b32 v39, 0
{mv}  s_mov_b64 exec, 1
  buffer_store_dwordx4 v[40:43], v39, s[16:19], s3 offen
  buffer_store_dwordx4 v[44:47], v39, s[16:19], s3 offen offset:16
  buffer_store_dwordx4 v[48:51], v39, s[16:19], s3 offen offset:32
  buffer_store_dword v52, v39, s[16:19], s3 offen offset:48
  s_mov_b64 exec, -1
  s_nop 1
'''

def fin(k, name, cfg):
    n = k.p.nm; st = cfg['stamp']
    mode = 0
    if st: mode = 'bars' if (name.startswith('s2') and cfg.get('bars', 1)) else ('pro' if st == 'pro' else max(1, (n + 6) // 7 - 1))
    if st and 'b1' in cfg and not name.startswith('s2'): mode = ('b', cfg['b1'])
    r = finalize(k.p, name, mode)
    if cfg.get('rt', 1): r = r.replace('s_memtime', 's_memrealtime')
    return r, sum(1 for o in k.p.ops if o.kind == 'bar')

def build(cfg):
    FULL[0] = cfg.get('fullflag', 1)
    hdr = open('cdna_kernels/' + NAME + '.s.ref').read().split('\n')
    out = [l for l in hdr if l.startswith(';') and '@launch' not in l and 'Override launch' not in l and 'grid=ceil' not in l]
    KN = NAME + '_kernel'
    out.append('; @launch grid=(256,1,1) block=(512,1,1) lds=163840')
    out += [
        '; Generated by gen/gen4.py + gen/sched.py (own generator: static MFMA-gap scheduler, waitcnt and wait-state insertion).',
        '; One fused kernel, 256 workgroups x 8 waves, one per CU.',
        ';  stage 1: 168 workgroups gate/up GEMM (LayerNorm folded into the epilogue: rs*(xW - m*colsum(W))), 88 workgroups',
        ';           q/k/v GEMM + windowed softmax attention on MFMA; h and o go to d_ws in MFMA-fragment order (write-through).',
        ';  stage 2: 231 tiles of 64x64: d = h*w_down, s = o*wo, out = x + s*silu(d).',
        ';  hand-offs: sc1 stores drained before a flag store, sc1 polls and loads; flags and row statistics carry a per-launch',
        ';           nonce published through d_debug, so stale words in d_ws are never taken for this launch\'s.']
    s = '\n'.join(out) + '\n.amdgcn_target "amdgcn-amd-amdhsa--gfx950"\n.text\n'
    s += f'.globl {KN}\n.p2align 8\n.type {KN},@function\n{KN}:\n'
    if cfg['stamp']: s += '  s_memtime s[78:79]\n  s_memrealtime s[80:81]\n'
    s += f'''  s_load_dwordx2 s[12:13], s[0:1], 0
  s_load_dwordx2 s[24:25], s[0:1], 72
  s_load_dwordx2 s[4:5], s[0:1], 16
  s_load_dwordx2 s[8:9], s[0:1], 48
  v_lshrrev_b32 v2, 6, v0
  s_cmp_ge_u32 s2, 256
  s_cbranch_scc1 L_end
  v_readfirstlane_b32 s30, v2
  s_and_b32 s56, s2, 7
  s_lshr_b32 s57, s2, 3
  s_cmp_ge_u32 s57, 21
  s_cbranch_scc1 L_att
  s_load_dwordx2 s[16:17], s[0:1], 32
  s_load_dwordx2 s[20:21], s[0:1], 40
  s_load_dwordx2 s[68:69], s[0:1], 8
@FFNPF@  ; ffn: rb = 3*(j>>1) + s/7 ; cb = 7*(j&1) + s%7
  s_mul_i32 s58, s57, 37
  s_lshr_b32 s58, s58, 8
  s_mul_i32 s59, s58, 7
  s_sub_u32 s59, s57, s59
  s_lshr_b32 s60, s56, 1
  s_mul_i32 s60, s60, 3
  s_add_u32 s58, s58, s60
  s_and_b32 s60, s56, 1
  s_mul_i32 s60, s60, 7
  s_add_u32 s59, s59, s60
  s_mul_i32 s33, s58, 176
  s_lshl_b32 s60, s33, 4
  s_mul_i32 s101, s58, 14
  s_add_u32 s101, s101, s59
  s_lshl_b32 s101, s101, 7
  s_add_u32 s101, s101, {FLG}
  s_mul_i32 s33, s58, 171
  s_min_u32 s33, s33, 1873
  s_lshl_b32 s43, s59, 8
  s_mul_i32 s46, s59, {16*CH}
  s_add_u32 s46, s46, {64*CH}
  s_add_u32 s46, s46, s60
'''
    e = stamp(cfg, 0x4000000, False) + '  s_branch L_s2\n'
    def two(gen, nm):
        r0, b0 = fin(gen(cfg, 0), nm + '0', cfg); r1, b1 = fin(gen(cfg, 1), nm + '1', cfg)
        assert b0 == b1, (b0, b1)
        h0, r0 = r0.split('  ;SPLIT\n'); h1, r1 = r1.split('  ;SPLIT\n')
        assert h0 == h1
        return h0 + f'  s_cmp_ge_u32 s30, 4\n  s_cbranch_scc1 L_{nm}1\n  s_branch L_{nm}0\n', f'L_{nm}0:\n' + r0 + e + f'L_{nm}1:\n' + r1 + e
    hf, bf = two(gen_ffn, 'ffn')
    s = s.replace('@FFNPF@', hf[:hf.index('  s_load_dwordx2 s[60:61]')]); s += hf[hf.index('  s_load_dwordx2 s[60:61]'):]
    s += f'''L_att:
  s_load_dwordx2 s[16:17], s[0:1], 8
@ATTPF@  ; att: rb = 11*(j>>2) + (s-21) ; hg = j&3
  s_lshr_b32 s58, s56, 2
  s_mul_i32 s58, s58, 11
  s_add_u32 s58, s58, s57
  s_sub_u32 s58, s58, 21
  s_and_b32 s59, s56, 3
  s_mul_i32 s60, s58, 94
  s_lshl_b32 s101, s58, 2
  s_add_u32 s101, s101, s59
  s_lshl_b32 s101, s101, 7
  s_add_u32 s101, s101, {FLG + 168*128}
  s_min_u32 s60, s60, 1953
  s_sub_u32 s33, s60, 16
  s_mul_i32 s43, s59, 224
  s_mul_i32 s46, s59, {16*CH}
  s_mul_i32 s60, s58, 1536
  s_add_u32 s46, s46, s60
  s_cmp_eq_u32 s58, 0
  s_cselect_b64 s[54:55], -1, 0
  s_lshl_b32 s47, s2, 3
  s_add_u32 s47, s47, s30
  s_cmp_lg_u32 s47, 2040
  s_cbranch_scc1 L_nononce
  s_load_dwordx2 s[36:37], s[0:1], 64
  s_memrealtime s[34:35]
  s_mov_b32 s38, 256
  s_mov_b32 s39, 0x20000
  v_mov_b32 v6, 0
  s_waitcnt lgkmcnt(0)
  s_or_b32 s34, s34, 1
  s_mul_i32 s35, s35, 0x9e3779b1
  s_xor_b32 s35, s35, s34
  v_mov_b32 v4, s34
  v_mov_b32 v5, s35
  s_mov_b64 exec, 1
  buffer_store_dwordx2 v[4:5], v6, s[36:39], 0 offen sc1
  s_mov_b64 exec, -1
L_nononce:
'''
    ha, ba = two(gen_att, 'att')
    s = s.replace('@ATTPF@', ha[:ha.index('  s_load_dwordx2 s[60:61]')]); s += ha[ha.index('  s_load_dwordx2 s[60:61]'):] + bf + ba
    s += '''L_s2:
  s_load_dwordx2 s[16:17], s[0:1], 56
  s_cmp_eq_u32 s70, 0
  s_cbranch_scc1 L_pub
  s_cmp_ge_u32 s30, 6
  s_cbranch_scc1 L_s2s
'''
    r0, b0 = fin(gen_s2(cfg, 0), 's2d', cfg); r1, b1 = fin(gen_s2(cfg, 1), 's2s', cfg)
    assert b0 == b1
    e2 = stamp(cfg, 0x4040000, True) + '  s_endpgm\n'
    s += r0 + e2 + 'L_s2s:\n' + r1 + e2
    s += 'L_pub:\n  ' + flag_off() + '\n  s_waitcnt vmcnt(0)\n  s_barrier\n  s_cmp_lg_u32 s30, 6\n  s_cbranch_scc1 L_end\n  ' + nonce_check('b') + '\n  ' + PUB + '\n  s_endpgm\n' + ''.join(SLOW) + 'L_end:\n  s_endpgm\n'
    s += f'''.section .rodata,"a"
.p2align 6
.amdhsa_kernel {KN}
  .amdhsa_next_free_vgpr 256
  .amdhsa_next_free_sgpr 102
  .amdhsa_accum_offset 176
  .amdhsa_group_segment_fixed_size 0
  .amdhsa_kernarg_size 80
  .amdhsa_user_sgpr_count 2
  .amdhsa_user_sgpr_kernarg_segment_ptr 1
  .amdhsa_system_sgpr_workgroup_id_x 1
.end_amdhsa_kernel
'''
    return s

if __name__ == '__main__':
    cfg = dict(CFG)
    out = 'cdna_kernels/' + NAME + '.s'
    for a in sys.argv[1:]:
        if a.startswith('out='): out = a[4:]; continue
        k, v = a.split('=', 1)
        cfg[k] = eval(v)
    open(out, 'w').write(build(cfg))
```

```python
import sys, struct
sys.path.insert(0, 'gen')
from sched import *

NAME = 'recurrent_scan__sliding_local_dilated__glu_gated_bilinear__prompt'
CH = 33792
AH_BYTES = 288 * CH
FLG = AH_BYTES
STO = AH_BYTES + 256 * 128
WS_BYTES = STO + 2048 * 16
CSL, CVL, PFL, LA, RA = 1536, 2560, 3072, 3584, 26112
CFG = dict(pq=2, s2_npre=4, lazy=1, ne=10, att_loop=6, att_sp=0.7, pfx=0, ofl='nt', phi=0, lk0=4, first=2, first_a=3, lk1=2, lims=[(5,3),(4,3),(5,3),(5,4),(5,4)], KT=12, stamp=False, st_flags='sc1', pf2=0, k2_rot=2, pfC=4, pfsw=[(0,2,4),(2,4,7)])
def f32(x): return '0x%08x' % struct.unpack('<I', struct.pack('<f', x))[0]
def mf(p, d, a, b, c, **kw): return I(p, f'v_mfma_f32_16x16x32_bf16 {d}, {a}, {b}, {c}', **kw)
ROWSEQ = [0, 0, 1, 2, 3, 4, 0, 5, 6, 7, 8, 1, 2, 3, 4, 0, 5, 6, 7]
def rowaddr(r): return LA if r == 8 else RA + 16384 * r
BLOCKS = [('a', 48), ('a', 64), ('a', 0), ('a', 16), ('a', 32)] + [('v', 64 + 16 * i) for i in range(5)]
def fr(n, o, c): b = BLOCKS[n % 10]; return vr(b[1] + o, c, b[0])

def bdma(p, n, rd=(), **kw):
    for h in range(2):
        v = 12 if h == 0 else 9
        I(p, f'v_add_u32 v12, s72, v11' if h == 0 else 'v_add_u32 v9, 7168, v12')
        I(p, f's_add_u32 m0, s76, {rowaddr(ROWSEQ[n]) + 1024*h}')
        kk = dict(kw)
        if 'early' in kk: kk['early'] += 2 * h; kk['dead'] += 2 * h
        I(p, f'buffer_load_dwordx4 v{v}, s[68:71], 0 offen lds', rd=list(rd), wr=[('tok_bd', n), ('tok_vq', 0)], **kk)
    G(p, 's_add_u32 s72, s72, s75\ns_cmp_eq_u32 s72, s73\ns_cselect_b32 s72, s74, s72')
def GS(p, text):
    lines = [l.strip() for l in text.split('\n') if l.strip()]
    i = 0
    while i < len(lines):
        if lines[i].startswith(('s_cmp', 's_bitcmp')):
            j = i + 1
            while j < len(lines) and lines[j].startswith(('s_cselect', 's_mov_b32')) and any(l.startswith('s_cselect') for l in lines[j:j+2]) and j - i < 4: j += 1
            G(p, '\n'.join(lines[i:j]))
            if j < len(lines) and (lines[j].startswith('s_cselect') or (lines[j].startswith('s_mov_b32') and j + 1 < len(lines) and lines[j+1].startswith('s_cselect'))):
                lines.insert(j, lines[i])
            i = j
        else:
            I(p, lines[i]); i += 1
def tr_setup(p, V, base, T):
    I(p, f"""v_lshrrev_b32 v{T}, 2, v1
            v_lshlrev_b32 v{T}, 7, v{T}
            v_and_b32 v{T+1}, 3, v1
            v_lshl_add_u32 v{T}, v{T+1}, 3, v{T}
            v_bfe_u32 v{T+1}, v1, 3, 2
            v_xor_b32 v{T+1}, s32, v{T+1}
            v_lshl_add_u32 v{T}, v{T+1}, 5, v{T}
            s_lshl_b32 s47, s32, 12
            s_add_u32 s47, s47, {base}
            v_add_u32 v{V}, s47, v{T}
            v_xor_b32 v{V+1}, 32, v{V}
            v_xor_b32 v{V+2}, 64, v{V}
            v_xor_b32 v{V+3}, 96, v{V}""")

class S1:
    def __init__(self, att, grp, cfg):
        self.att, self.grp, self.cfg = att, grp, cfg
        self.p = Prog(vm_lat=cfg.get('vm_lat', 900), gap=32, ds_lat=cfg.get('dsl_a' if att else 'dsl_f', 110))
        if att:
            self.NT, self.NI, self.pitch, self.NM = 7, 11, 2688, 3
            XA, XB, XC = RA, RA + 16384, RA + 71680
            w0 = RA + 30720
            self.WS = [w0 + 8192 * i for i in range(5)] + [RA + 86016 + 8192 * i for i in range(6)]
            self.wph = 2
        else:
            self.NT, self.NI, self.pitch, self.NM = 11, 8, 3584, 2
            XA, XB, XC = RA, RA + 22528, RA + 94208
            self.WS = [RA + 45056 + 8192 * i for i in range(6)] + [RA + 116736, RA + 124928]
            self.wph = 4
        assert self.WS[-1] + 8192 <= 163840
        self.XS = [XB, XC, XA, LA, XB, XC, LA]
        self.XPREV = {4: 0, 5: 1, 6: 3}
        if att and cfg.get('x_xp'): self.XPREV[6] = 2
        self.WB = self.WS[0]
        self.ONES = self.NT * 16 - 1
        self.NU = (self.NT + 3) // 4
        self.dmaq, self.have, self.wmap, self.pending_free = [], set(), {}, []
        self.xring = 0; self.nimg = 0; self.lastbar = 0
        self.t0 = (0 if att else 6) * grp
        self.rot = cfg.get('phi', 0) if not att else cfg.get('phia', 0)
    V_OFFX, V_XB, V_PF, V_TR, V_XH = 10, 13, 15, 17, 21
    V_TABW, V_TABR, V_OFFW, V_CSA = 30, 27, 32, 34
    def waddr(self, u): return self.WS[(u + self.wph) % self.NI]
    def head(self):
        p, att = self.p, self.att
        if self.cfg.get('pfi', 1):
            nm = 'att' if att else 'ffn'; KN = NAME + '_kernel'; NL = self.cfg.get('pfin', 8)
            p.add(f"""s_getpc_b64 s[48:49]
L_pc{nm}:
  s_sub_u32 s48, s48, L_pc{nm}-{KN}
  s_subb_u32 s49, s49, 0
  s_mov_b32 s50, L_{nm}0-{KN}
  s_cmp_ge_u32 s30, 4
  s_cselect_b32 s50, L_{nm}1-{KN}, s50
  s_lshl_b32 s51, s57, 3
  s_add_u32 s51, s51, s30
  s_lshl_b32 s51, s51, 8
  v_and_b32 v1, 63, v0
  v_and_b32 v4, 1, v1
  v_lshl_add_u32 v4, v4, 7, s51
  v_lshl_add_u32 v5, v1, 7, s50
  v_cmp_gt_u32 vcc, {NL}, v1
  s_nop 1
  v_cndmask_b32 v4, v4, v5, vcc
  v_min_u32 v4, L_end-{KN}, v4
  v_mov_b32 v5, s49
  v_add_co_u32 v4, vcc, s48, v4
  s_nop 1
  v_addc_co_u32 v5, vcc, 0, v5, vcc
  global_load_dword v35, v[4:5], off""", 'vml', [], [], lat=4)
        p.add('s_load_dwordx2 s[60:61], s[0:1], 64', 'salu', [], [])
        p.add('s_load_dwordx2 s[72:73], s[0:1], 56', 'salu', [], [])
        I(p, 'v_and_b32 v1, 63, v0\ns_and_b32 s29, s30, 3\ns_and_b32 s31, s30, 1\ns_lshr_b32 s32, s30, 1')
        I(p, 'v_lshrrev_b32 v3, 4, v1\nv_and_b32 v2, 15, v1')
        I(p, 's_mov_b32 s14, 1835008\ns_mov_b32 s15, 0x20000\ns_mov_b32 s19, 0x20000')
        I(p, f's_mov_b32 s18, {1204224 if att else 1605632}')
        if not att: I(p, 's_mov_b32 s22, 1605632\ns_mov_b32 s23, 0x20000')
        I(p, f"""s_lshl_b32 s47, s32, 2
                 s_and_b32 s47, s47, 4
                 v_or_b32 v4, s47, v3
                 v_lshlrev_b32 v5, 1, v4
                 v_xor_b32 v5, v5, v2
                 s_mul_i32 s52, s30, {4*self.pitch}
                 s_add_u32 s52, s52, s43
                 v_mul_u32_u24 v6, {self.pitch}, v3
                 v_lshl_add_u32 v6, v5, 4, v6
                 v_add_u32 v{self.V_OFFW}, s52, v6""")
        if not att and self.cfg.get('mix', 0):
            I(p, f'v_and_b32 v6, 8, v5\nv_lshl_add_u32 v{self.V_OFFW}, v6, 4, v{self.V_OFFW}')
        if att:
            I(p, f'v_cmp_le_u32 vcc, 14, v5\nv_mov_b32 v6, 0x40000000\nv_cndmask_b32 v{self.V_OFFW}, v{self.V_OFFW}, v6, vcc')
        I(p, f"""v_add_u32 v{self.V_OFFW+1}, {32*self.pitch}, v{self.V_OFFW}
                 s_lshl_b32 s41, s30, 10
                 s_lshl_b32 s53, s31, 2
                 v_or_b32 v4, s53, v3
                 v_and_b32 v5, 7, v1
                 v_xor_b32 v4, v4, v5
                 v_lshrrev_b32 v5, 3, v1
                 v_mul_u32_u24 v5, 896, v5
                 v_lshl_add_u32 v{self.V_OFFX}, v4, 4, v5
                 s_lshl_b32 s39, s30, 3
                 s_add_u32 s39, s39, s33
                 s_mul_i32 s39, s39, 896""")
        if self.rot == -1:
            I(p, f's_mul_i32 s28, s57, {self.cfg.get("rmul", 1)}\ns_mul_i32 s47, s28, 9363\ns_lshr_b32 s47, s47, 16\ns_mul_i32 s47, s47, 7\ns_sub_u32 s28, s28, s47')
        elif self.rot == -2:
            I(p, 's_and_b32 s28, s57, 1\ns_lshl_b32 s28, s28, 2')
        elif self.rot == -3:
            I(p, 's_mul_i32 s47, s57, 37\ns_lshr_b32 s47, s47, 8\ns_add_u32 s28, s57, s47\ns_mul_i32 s47, s28, 43\ns_lshr_b32 s47, s47, 7\ns_mul_i32 s47, s47, 3\ns_sub_u32 s28, s28, s47\ns_lshl_b32 s28, s28, 1')
        elif self.rot:
            I(p, f's_lshl_b32 s28, s56, 2\ns_lshr_b32 s28, {self.rot}, s28\ns_and_b32 s28, s28, 7')
        for n in range(self.NU):
            if n == 0 and att: I(p, 's_max_i32 s34, s39, 0')
            else: I(p, f's_add_u32 s{34+n}, s39, {n*64*896}')
        if self.rot:
            I(p, 's_lshl_b32 s100, s28, 7')
            for n in range(self.NU): I(p, f's_add_u32 s{34+n}, s{34+n}, s100')
        G(p, """s_cmp_eq_u32 s30, 5
                s_cselect_b32 s45, 0x00ffffff, -1
                s_cmp_ge_u32 s30, 6
                s_cselect_b32 s45, 0, s45
                s_cselect_b32 s44, 0, -1""")
        p.add('s_waitcnt lgkmcnt(0)', 'salu', [], R('s', 12, 2) + R('s', 16, 2) + R('s', 20, 2) + R('s', 24, 2) + R('s', 4, 2) + R('s', 8, 2) + R('s', 60, 2) + R('s', 68, 2) + R('s', 72, 2))
        for j in range(7):
            for m in range(self.NM): self.q_w(2 * j, m)
            for n in range(self.NU): self.dmaq.append(('x', j, n))
            for m in range(self.NM): self.q_w(2 * j + 1, m)
        self.pump(limit=5, at=-999)
        if self.cfg.get('ob', 1): p.add('s_barrier', 'bar', [], [('tok_bar', 0), ('tok_ep', 0)])
        p.add(';SPLIT', 'salu', [], [])
        p.fixed = len(p.ops)
        if self.cfg.get('lazy', 1): p.default_early = 0
    def setup_b(self, V_ST):
        p, att = self.p, self.att
        self.V_ST = V_ST
        I(p, f's_mov_b32 s27, 0x20000\ns_mov_b32 s26, {WS_BYTES}')
        I(p, f"""v_lshrrev_b32 v4, 1, v2
                 v_xor_b32 v4, v4, v3
                 v_lshlrev_b32 v5, 7, v2
                 v_add_u32 v5, {self.t0*2048}, v5
                 v_lshl_add_u32 v{self.V_XB}, v4, 4, v5
                 v_xor_b32 v{self.V_XB+1}, 64, v{self.V_XB}
                 v_add_u32 v{self.V_XH}, 65536, v{self.V_XB}
                 v_add_u32 v{self.V_XH+1}, 65536, v{self.V_XB+1}""")
        I(p, f"""v_bfe_u32 v4, v1, 2, 2
                 v_lshl_add_u32 v5, v3, 3, v4
                 v_lshlrev_b32 v5, 8, v5
                 v_add_u32 v5, {self.WB}, v5
                 v_and_b32 v6, 1, v3
                 v_lshl_add_u32 v4, v6, 2, v4
                 v_lshlrev_b32 v4, 5, v4
                 v_and_b32 v6, 3, v1
                 s_mul_i32 s52, s29, {56 if att else 64}
                 v_lshl_add_u32 v7, v6, 3, s52
                 v_xor_b32 v8, v7, v4
                 v_add_u32 v{self.V_TR}, v8, v5
                 v_add_u32 v7, 32, v7""")
        if att: I(p, 'v_cmp_eq_u32 vcc, 3, v6\nv_mov_b32 v8, 224\nv_cndmask_b32 v7, v7, v8, vcc')
        I(p, f'v_xor_b32 v8, v7, v4\nv_add_u32 v{self.V_TR+1}, v8, v5')
        I(p, f'v_add_u32 v{self.V_TR+2}, 49152, v{self.V_TR}\nv_add_u32 v{self.V_TR+3}, 49152, v{self.V_TR+1}')
        if self.grp == 1:
            I(p, f"""v_and_b32 v4, 7, v1
                     v_lshlrev_b32 v4, 4, v4
                     v_add_u32 v4, {(self.NT-1)*2048 + 15*128}, v4
                     v_add_u32 v5, 65536, v4
                     v_mov_b32 v6, 0x3f803f80
                     v_mov_b32 v7, 0x3f803f80
                     v_mov_b32 v8, 0x3f803f80
                     v_mov_b32 v9, 0x3f803f80""")
            for xa in self.XS[:4]:
                I(p, f'ds_write_b128 v{4 + xa // 65536}, v[6:9] offset:{xa % 65536}', wr=[('tok_ones', 0)])
        I(p, f'v_mul_u32_u24 v4, {CH}, v3\nv_lshl_add_u32 v{V_ST}, v2, 4, v4')
        if not att and self.cfg.get('mix', 0):
            I(p, f's_and_b32 s52, s29, 2\ns_add_u32 s52, s52, s29\ns_mul_i32 s52, s52, {4*CH}\ns_add_u32 s46, s46, s52')
        else:
            I(p, f's_mul_i32 s52, s29, {4*CH}\ns_add_u32 s46, s46, s52')
        I(p, f'v_lshlrev_b32 v{self.V_TABR}, {2 if att else 3}, v2')
        I(p, f's_lshl_b32 s52, s29, 8\ns_add_u32 s52, s52, {CSL}\nv_lshl_add_u32 v{self.V_CSA}, v3, 6, s52')
        I(p, 's_mov_b32 s62, 0x80008000\ns_mov_b32 s63, 0x80008000')
    def setup_s2(self):
        p = self.p
        ng = self.cfg.get('k2_rot', 7)
        def tab(N): return sum(((c % ng) * N // ng) << (4 * c) for c in range(7))
        cnt = self.cfg.get('host', [29] * 7 + [28]); assert sum(cnt) == 231
        cum = [sum(cnt[:i]) for i in range(8)]
        pk = lambda v: sum(x << (8 * i) for i, x in enumerate(v))
        GS(p, f"""s_mov_b32 s66, {pk(cum[:4])}
                 s_mov_b32 s67, {pk(cnt[:4])}
                 s_cmp_ge_u32 s56, 4
                 s_cselect_b32 s66, {pk(cum[4:])}, s66
                 s_cselect_b32 s67, {pk(cnt[4:])}, s67
                 s_lshl_b32 s47, s56, 3
                 s_lshr_b32 s66, s66, s47
                 s_lshr_b32 s67, s67, s47
                 s_and_b32 s47, s66, 255
                 s_and_b32 s77, s67, 255
                 s_add_u32 s47, s47, s57
                 s_mul_i32 s66, s47, 9363
                 s_lshr_b32 s66, s66, 16
                 s_mul_i32 s67, s66, 7
                 s_sub_u32 s67, s47, s67
                 s_cmp_ge_u32 s30, 6
                 s_cselect_b32 s68, s4, s8
                 s_cselect_b32 s69, s5, s9
                 s_cselect_b32 s70, s6, s10
                 s_cselect_b32 s75, 28, 32
                 s_cselect_b32 s73, 16, 19
                 s_cselect_b32 s74, 0, s32
                 s_mov_b32 s42, {tab(18)}
                 s_cselect_b32 s42, {tab(16)}, s42
                 s_cmp_ge_u32 s57, s77
                 s_cselect_b32 s70, 0, s70
                 s_mov_b32 s71, 0x20000
                 s_mul_i32 s75, s75, 896
                 s_mul_i32 s74, s74, {19*28672}
                 s_mul_i32 s73, s73, s75
                 s_add_u32 s73, s73, s74
                 s_lshl_b32 s72, s67, 2
                 s_lshr_b32 s42, s42, s72
                 s_and_b32 s42, s42, 15
                 s_mul_i32 s72, s42, s75
                 s_add_u32 s72, s72, s74
                 s_lshl_b32 s76, s30, 11""")
        I(p, """v_lshlrev_b32 v4, 1, v3
                v_and_b32 v5, 7, v1
                v_xor_b32 v4, v4, v5
                v_lshrrev_b32 v5, 3, v1
                v_mul_u32_u24 v6, 896, v5
                v_lshl_add_u32 v6, v4, 4, v6
                s_mul_i32 s47, s31, 14336
                s_lshl_b32 s52, s67, 7
                s_add_u32 s47, s47, s52
                v_add_u32 v11, s47, v6""")
        tr_setup(p, 4, RA, 6)
    def nonce(self, V):
        self.p.add(f'v_mov_b32 v{V}, 0', 'valu', [], [('v', V)])
        self.p.add(f'global_load_dwordx2 {vr(V,2)}, v{V}, s[60:61] sc1', 'vml', [('v', V), ('tok_ep', 0)] + R('s', 60, 2), R('v', V, 2), early=self.lastbar, dead=self.lastbar + 2)
    def st_load(self):
        p = self.p
        if self.att: return
        I(p, """s_lshl_b32 s37, s2, 3
                s_add_u32 s37, s37, s30
                s_mul_i32 s58, s37, 1792
                v_and_b32 v56, 31, v1
                v_cmp_gt_u32 vcc, 28, v56
                v_lshrrev_b32 v57, 5, v1
                v_mul_u32_u24 v57, 896, v57
                v_lshl_add_u32 v56, v56, 4, v57
                v_add_u32 v56, s58, v56
                v_cndmask_b32 v56, -512, v56, vcc""".replace('-512', 'v60'), dead=-930) if I(p, 'v_mov_b32 v60, 0x40000000', dead=-931) else None
        I(p, 'buffer_load_dwordx4 v[48:51], v56, s[12:15], 0 offen', rd=[('tok_ep', 0), ('m0', 0)], dead=-929)
        I(p, 'buffer_load_dwordx4 v[52:55], v56, s[12:15], 0 offen offset:448', rd=[('tok_ep', 0), ('m0', 0)], dead=-928)
    def st_compute(self):
        p = self.p; at = self.lastbar
        if self.att: return
        dots = 'v_mov_b32 v56, 0\n  v_mov_b32 v57, 0\n  s_mov_b32 s58, 0x3f803f80\n  ' + '\n  '.join(
            [f'v_dot2c_f32_bf16 v56, s58, v{48+i}\n  v_dot2c_f32_bf16 v57, v{48+i}, v{48+i}' for i in range(8)]) + '\n  s_nop 2'
        if self.cfg.get('st_c', 2) < 0:
            p.add(dots, 'pk', R('v', 48, 8) + [('tok_ep', 0)], R('v', 56, 2) + [('s', 58)], dead=-100)
        else:
            b = p.ops[self.ep0]; assert b.kind == 'bar'
            dots = dots.replace('s58', 's65')
            b.glue = ([], [Op(dots, 'pk', R('v', 48, 8), R('v', 56, 2) + [('s', 65)])])
            b.rd += R('v', 48, 8); b.wr += R('v', 56, 2) + [('s', 65)]
        I(p, f"""v_permlane16_swap_b32 v56, v57
                 v_add_f32 v52, v56, v57
                 v_add_f32_dpp v52, v52, v52 row_ror:8 row_mask:0xf bank_mask:0xf
                 v_add_f32_dpp v52, v52, v52 row_ror:4 row_mask:0xf bank_mask:0xf
                 v_add_f32_dpp v52, v52, v52 row_ror:2 row_mask:0xf bank_mask:0xf
                 v_add_f32_dpp v52, v52, v52 row_ror:1 row_mask:0xf bank_mask:0xf
                 v_mov_b32 v53, v52
                 v_permlane16_swap_b32 v52, v53
                 v_mul_f32 v52, {f32(1/448)}, v52
                 v_mul_f32 v54, v52, v52
                 v_mul_f32 v53, {f32(1/448)}, v53
                 v_sub_f32 v53, v53, v54
                 v_max_f32 v53, 0, v53
                 v_cvt_pk_bf16_f32 v54, -v52, v53
                 v_lshlrev_b32 v48, 16, v54
                 v_and_b32 v53, 0xffff0000, v54
                 v_add_f32 v53, {f32(1e-5)}, v53
                 v_cvt_pk_bf16_f32 v53, v53, v53
                 v_and_b32 v53, 0xffff0000, v53
                 v_sqrt_f32 v53, v53
                 v_cvt_pk_bf16_f32 v53, v53, v53
                 v_and_b32 v53, 0xffff0000, v53
                 v_rcp_f32 v50, v53
                 s_lshl_b32 s37, s37, 5
                 s_add_u32 s37, s37, {STO}
                 v_lshrrev_b32 v55, 1, v1
                 v_add_u32 v55, s37, v55
                 v_and_b32 v56, 31, v1
                 v_cmp_eq_u32 vcc, 0, v56
                 v_cndmask_b32 v55, -16, v55, vcc""")
    def st_publish(self):
        p = self.p; at = self.lastbar; tag = f's{int(self.att)}{self.grp}'
        p.add(nonce_check(tag, 58, 54), 'rfl', R('v', 58, 2) + R('s', 60, 2), R('v', 58, 2) + [('v', 54), ('vcc', 0), ('s', 65)], early=at + 1, dead=at + 2)
        if self.att: return
        I(p, 'v_mov_b32 v49, v58\nv_mov_b32 v51, v59')
        I(p, 'buffer_store_dwordx4 v[48:51], v55, s[24:27], 0 offen sc1', rd=[('tok_ep', 0), ('m0', 0)], early=at + 2, dead=at + 3)
    def st_fetch(self):
        p = self.p; at = self.lastbar
        I(p, f"""s_lshl_b32 s58, s29, 6
                 v_add_u32 v52, s58, v1
                 v_min_u32 v52, {126 if self.att else 190}, v52
                 v_lshlrev_b32 v{self.V_TABW}, {2 if self.att else 3}, v52
                 v_add_u32 v52, s33, v52
                 v_max_i32 v52, 0, v52
                 v_min_u32 v52, 2047, v52
                 v_lshlrev_b32 v52, 4, v52
                 v_add_u32 v52, {STO}, v52""")
        I(p, 'buffer_load_dwordx4 v[48:51], v52, s[24:27], 0 offen sc1', rd=[('tok_ep', 0), ('m0', 0)], early=at + 1, dead=at + 2)
    def st_table(self, VN):
        p = self.p; at = self.lastbar; tag = f't{int(self.att)}'
        SLOW.append(f"""L_q{tag}:
  s_mov_b32 s65, 0
L_qo{tag}:
  s_sleep 4
  buffer_load_dwordx4 v[48:51], v52, s[24:27], 0 offen sc1
  s_add_u32 s65, s65, 1
  s_waitcnt vmcnt(0)
  v_cmp_ne_u32 vcc, v49, v58
  v_cmp_ne_u32 s[48:49], v51, v59
  s_cmp_ge_u32 s65, 0x40000
  s_cbranch_scc1 L_r{tag}
  s_nop 1
  s_or_b64 vcc, vcc, s[48:49]
  s_cbranch_scc1 L_qo{tag}
  s_branch L_r{tag}
""")
        p.add(f"""v_cmp_ne_u32 vcc, v49, v58
  v_cmp_ne_u32 s[48:49], v51, v59
  s_nop 2
  s_or_b64 vcc, vcc, s[48:49]
  s_cbranch_scc1 L_q{tag}
L_r{tag}:""", 'rfl', R('v', 48, 5) + R('v', 58, 2), R('v', 48, 4) + [('vcc', 0), ('s', 65), ('s', 48), ('s', 49)], early=at + 1, dead=at + 2)
        if self.att:
            I(p, f'ds_write_b32 v{self.V_TABW}, v48', wr=[('tok_tw', 0)], dead=at + 4)
            I(p, f'ds_write_b32 v{self.V_TABW}, v50 offset:1024', wr=[('tok_tw', 0)], dead=at + 5)
        else:
            I(p, 'v_mul_f32 v49, v50, v50')
            I(p, f'ds_write_b64 v{self.V_TABW}, v[48:49]', wr=[('tok_tw', 0)], dead=at + 4)
        I(p, f'v_mov_b32 v{VN}, v58\nv_mov_b32 v{VN+1}, v59')
    def st_hooks(self, ks, VN):
        c = self.cfg
        if ks == c.get('st_c', 2): self.st_compute()
        if self.att and not self.grp: return
        if ks == (c.get('st_f', 9) if self.att else c.get('st_n', 3)): self.nonce(58)
        if ks == (c.get('st_t', 11) if self.att else c.get('st_p', 5)): self.st_publish()
        if self.grp:
            if ks == c.get('st_f', 9): self.st_fetch()
            if ks == c.get('st_t', 11): self.st_table(VN)
    def early_b(self, n, at):
        bdma(self.p, n, rd=[('tok_ep', 0)], early=at, dead=at + 1)
    def early_read(self, n):
        for ct in range(4):
            for e in range(2):
                I(self.p, f'ds_read_b64_tr_b16 {fr(n, 4*ct+2*e, 2)}, v{4+ct} offset:{e*2048}', rd=[('tok_ep', 0)], wr=[('tok_er', n)])
        self.pending_free.append((('tok_er', n), ('tok_ef', n)))
    def eb_hooks(self, ks, plan):
        if ks in (9, 12): self.early_read(0 if ks == 9 else 1)
        for q, n in enumerate({7: [0], 10: [1]}.get(ks, []) + plan.get(ks, [])):
            self.early_b(n, self.lastbar + 2 + 5 * q)
        if ks in (8, 11): self.pending_free.append((('tok_bd', 0 if ks == 8 else 1), ('tok_el', ks)))
    def pf_code(self):
        if self.cfg.get('p1', -1) == self.grp: self.p.add('s_setprio 1', 'salu', [], [], dead=-999)
        return
    def pf_tlb(self):
        if not self.cfg.get('tlb', 0): return
        p, V = self.p, self.V_PF
        I(p, f"""s_mov_b32 s27, 0x20000
                 s_mov_b32 s26, {WS_BYTES}
                 s_lshl_b32 s58, s57, 3
                 s_add_u32 s58, s58, s30
                 s_mul_i32 s59, s58, {(WS_BYTES // 255) & ~127}
                 s_min_u32 s59, s59, {WS_BYTES - 128}
                 v_mov_b32 v{V}, s59
                 s_mul_i32 s59, s58, 7168
                 v_mov_b32 v{V+1}, s59""")
        self.touch(V, 's[24:27]', dead=-940)
        p.add(f'global_load_dword v35, v{V+1}, s[72:73]', 'vml', [('v', V + 1), ('tok_ep', 0), ('m0', 0)] + R('s', 72, 2), [], dead=-939)
    def pf_setup(self):
        I(self.p, 's_mov_b32 s10, 1605632\ns_mov_b32 s11, 0x20000\ns_mov_b32 s6, 401408\ns_mov_b32 s7, 0x20000')
        if not self.att:
            I(self.p, 's_lshl_b32 s59, s2, 2\ns_add_u32 s59, s59, s29\ns_mov_b32 s98, 1204224\ns_mov_b32 s99, 0x20000' .replace('s98', 's70').replace('s99', 's71'))
    def lin(self, V, srd, base, nbytes, nw, idx, **kw):
        ST = self.cfg.get('pfst', 128); sh = ST.bit_length() - 1
        c = -(-nbytes // (ST * nw))
        assert c <= 64
        I(self.p, f's_mul_i32 s58, s{idx}, {c*ST}\ns_add_u32 s58, s58, {base}\nv_min_u32 v{V}, {c-1}, v1\nv_lshl_add_u32 v{V}, v{V}, {sh}, s58')
        self.touch(V, srd, **kw)
    def pf_phase(self, a, b, **kw):
        p, V, n = self.p, self.V_PF, b - a
        if self.att or not self.cfg.get('pf1', 1): return
        if self.cfg.get('pfw', 0): self.lin(V, 's[20:23]' if self.grp else 's[16:19]', a * 229376, n * 229376, 672, 59, **kw)
        if self.grp == 0: self.lin(V + 1, 's[68:71]', a * 172032, n * 172032, 672, 59, **kw)
        elif self.cfg.get('pfx', 1) == 0: pass
        elif self.cfg.get('xlin', 0):
            if not getattr(self, 'xdone', False): self.lin(V + 1, 's[12:15]', 0, 1835008, 672, 59, **kw); self.xdone = True
        else:
            I(p, f"""s_mul_i32 s58, s59, {4*896}
                     s_add_u32 s58, s58, {a*128}
                     v_min_u32 v{V+1}, {n-1}, v2
                     v_lshlrev_b32 v{V+1}, 7, v{V+1}
                     v_mad_u32_u24 v{V+1}, v3, s3, v{V+1}
                     v_add_u32 v{V+1}, s58, v{V+1}""")
            self.touch(V + 1, 's[12:15]', **kw)
    def pf_w2(self, **kw):
        V = self.V_PF
        if not self.cfg.get('pf1', 1): return
        if self.att != bool(self.cfg.get('pfCatt', 0)): return
        nw = 352 if self.att else 672
        if self.att: I(self.p, 's_sub_u32 s59, s2, 168\ns_lshl_b32 s59, s59, 2\ns_add_u32 s59, s59, s29')
        self.lin(V, 's[8:11]', 802816 * self.grp, 802816, nw, 59, **kw)
        if self.grp == 0: self.lin(V + 1, 's[4:7]', 0, 401408, nw, 59, **kw)
    def touch(self, V, srd, off=0, **kw):
        k, r, w, c = auto(f'buffer_load_dword v35, v{V}, {srd}, 0 offen')
        self.p.add(f'buffer_load_dword v35, v{V}, {srd}, 0 offen offset:{off}', 'vml', r + [('tok_ep', 0), ('m0', 0)], [], **kw)
    def prefetch_k2(self, piece):
        p, V = self.p, self.V_PF
        if not self.cfg.get('pf2', 1) or self.att: return
        if piece == 0:
            I(p, f"""s_lshl_b32 s59, s57, 3
                     s_add_u32 s59, s59, s30
                     s_mul_i32 s58, s59, {75*128}
                     s_mul_i32 s59, s59, {19*128}
                     v_min_u32 v{V}, 14, v1
                     v_lshl_add_u32 v{V}, v{V}, 7, s58
                     v_min_u32 v{V+1}, 18, v1
                     v_lshl_add_u32 v{V+1}, v{V+1}, 7, s59""")
        kw = dict(early=self.lastbar + 2, dead=self.lastbar + 4)
        if piece in (2, 4): I(p, f'v_add_u32 v{V}, 3840, v{V}')
        if piece < 5: self.touch(V, 's[8:11]', 1920 * (piece % 2), **kw)
        else: self.touch(V + 1, 's[4:7]', **kw)
    def q_w(self, ks, m):
        self.wmap[(ks, m)] = self.nimg
        self.dmaq.append(('w', ks, m, self.nimg)); self.nimg += 1
    def pump(self, limit=99, at=None, sp=4):
        p = self.p; k = 0
        if at is None: at = max(self.lastbar, 0) + 1 + (sp / 2.0) * self.grp
        while self.dmaq and k < limit:
            def free(d):
                if d[0] == 'x': return d[1] not in self.XPREV or ('tok_xfree', self.XPREV[d[1]]) in self.have
                return d[3] < self.NI or ('tok_wfree', d[3] - self.NI) in self.have
            if not free(self.dmaq[0]) and not self.rot and self.cfg.get('byp', 1):
                o = next((i for i, e in enumerate(self.dmaq) if e[0] != self.dmaq[0][0]), None)
                if o is not None and free(self.dmaq[o]): self.dmaq.insert(0, self.dmaq.pop(o))
            d = self.dmaq[0]
            kw = dict(early=at + sp * k, dead=at + sp * k + 1)
            if d[0] == 'x':
                _, j, n = d
                rd = []
                if j in self.XPREV:
                    tok = ('tok_xfree', self.XPREV[j])
                    if tok not in self.have: return
                    rd = [tok]
                I(p, f's_add_u32 m0, s41, {self.XS[j] + 8192*n - (0 if self.rot else 128*j)}')
                if n == self.NU - 1 and (self.grp == 1 or j == 0):
                    kw.update(pre=[mk('s_mov_b64 exec, s[44:45]')], post=[mk('s_mov_b64 exec, -1')], maybe=True)
                    rd = rd + R('s', 44, 2)
                I(p, f'buffer_load_dwordx4 v{self.V_OFFX}, s[12:15], s{34+n} offen offset:{0 if self.rot else 128*j} lds', rd=rd + [('tok_ep', 0)], wr=[('tok_xd', j, n)], **kw)
            else:
                _, ks, m, u = d
                rd = []
                if u >= self.NI:
                    tok = ('tok_wfree', u - self.NI)
                    if tok not in self.have: return
                    rd = [tok]
                off = 896 * m if self.att else 0
                srd = 's[16:19]' if (self.att or m == 0) else 's[20:23]'
                if ks % 2 == 0 and m == 0:
                    if not self.rot: I(p, f's_mov_b32 s64, {(ks//2)*64*self.pitch}')
                    elif ks == 0:
                        I(p, f's_mul_i32 s64, s28, {64*self.pitch}')
                    else:
                        G(p, f's_add_u32 s28, s28, 1\ns_cmp_eq_u32 s28, 7\ns_cselect_b32 s28, 0, s28\ns_mov_b32 s100, 128\ns_cselect_b32 s100, -768, s100\ns_mul_i32 s64, s28, {64*self.pitch}')
                        for n in range(self.NU): I(p, f's_add_u32 s{34+n}, s{34+n}, s100')
                I(p, f's_add_u32 m0, s41, {self.waddr(u) - off}')
                I(p, f'buffer_load_dwordx4 v{self.V_OFFW + (ks&1)}, {srd}, s64 offen offset:{off} lds', rd=rd + [('tok_ep', 0)], wr=[('tok_wd', u)], **kw)
            self.dmaq.pop(0); k += 1
    def barrier(self, xs=(), ws=(), rd=(), wr=(), look=8):
        rd, wr = list(rd), [('tok_bar', 0), ('tok_ep', 0)] + list(wr)
        for j in xs:
            rd += [('tok_xd', j, n) for n in range(self.NU)]; wr.append(('tok_xr', j))
        for (ks, m) in ws:
            u = self.wmap[(ks, m)]
            rd.append(('tok_wd', u)); wr.append(('tok_wr', u))
        for (a, b) in self.pending_free:
            rd.append(a); wr.append(b); self.have.add(b)
        self.pending_free = []
        self.retime(self.p.nm - look)
        self.lastbar = self.p.nm - look
        self.ep0 = len(self.p.ops)
        self.p.add('s_barrier', 'bar', rd, wr, early=self.p.nm - look, dead=self.p.nm - look + 2)
    ep0 = None
    def retime(self, nextbar):
        if self.ep0 is None or not self.cfg.get('retime', 1): return
        ops = [o for o in self.p.ops[self.ep0:] if o.kind in ('dma', 'vml', 'vms') and ('tok_ep', 0) in o.rd]
        if not ops: return
        lo = max(self.lastbar, 0); span = max(nextbar - lo - 1, 1)
        for i, o in enumerate(ops):
            o.early = lo + (i + (0.25 if self.grp == 0 else 0.75)) * span / len(ops)
            o.dead = o.early + 1
    def epoch(self, ks, look, xfree=None, plan=None):
        cfg = self.cfg
        if xfree is not None:
            for j in xfree: self.pending_free.append((('tok_xrd', j), ('tok_xfree', j)))
        self.barrier(xs=[ks // 2] if ks % 2 == 0 else [], ws=[(ks, m) for m in range(self.NM)],
                     rd=[('tok_ones', 0)] if (ks == 0 and self.grp) else [], look=look)
        if xfree is None and ks % 2 == 0 and 2 <= ks: self.pending_free.append((('tok_xrd', ks // 2 - 1), ('tok_xfree', ks // 2 - 1)))
        lb = max(self.lastbar, 0)
        self.eb_hooks(ks, plan)
        for (e, a, b) in cfg.get('pfs', [(-1, 1, 2), (0, 2, 4), (2, 4, 7)]):
            if e == ks: self.pf_phase(a, b, early=lb, dead=lb + 1)
        for (e, a, b) in cfg.get('pfsw', []):
            if e == ks and not self.att: self.lin(self.V_PF, 's[20:23]' if self.grp else 's[16:19]', a * 229376, (b - a) * 229376, 672, 59, early=lb, dead=lb + 1)
        if ks == cfg.get('pfC', 4): self.pf_w2(early=lb, dead=lb + 1)
        if ks == 6: self.setup_s2()
        if 0 <= ks - cfg.get('pf2_at', 4) < 6: self.prefetch_k2(ks - cfg.get('pf2_at', 4))
        lims = cfg.get('lims', [(5, 1), (9, 2), (7, 3)])
        lim, sp = lims[ks] if ks < len(lims) else (cfg.get('lim', 4), 3.5)
        self.pump(limit=lim, sp=sp * {(0, 0): 24, (0, 1): 20, (1, 0): 22, (1, 1): 18}[(int(self.att), self.grp)] / 24.0 * cfg.get('spk', 0.9))
    def wfrag(self, ks, m, base):
        u = self.wmap[(ks, m)]; off = self.waddr(u) - self.WB
        win = 1 if off >= 49152 else 0
        for s in range(2):
            for e in range(2):
                I(self.p, f'ds_read_b64_tr_b16 {ar(base+4*s+2*e,2)}, v{self.V_TR+2*win+s} offset:{off - 49152*win + e*1024}',
                  rd=[('tok_wr', u)], wr=[('tok_wrd', u)])
        self.pending_free.append((('tok_wrd', u), ('tok_wfree', u)))
    def xfrag(self, t, ks, stat=None):
        j, e = ks >> 1, ks & 1
        r = self.XR[self.xring % len(self.XR)]; self.xring += 1
        off = self.XS[j] + (t - self.t0) * 2048
        a = (self.V_XH if off >= 65536 else self.V_XB) + e; off %= 65536
        I(self.p, f'ds_read_b128 {r}, v{a} offset:{off}', rd=[('tok_xr', j)], wr=[('tok_xrd', j)])
        return r
    def masked(self, text, sreg, **kw):
        I(self.p, text, rd=R('s', sreg, 2) + list(kw.pop('rd', [])), pre=[mk(f's_mov_b64 exec, s[{sreg}:{sreg+1}]')], post=[mk('s_mov_b64 exec, -1')], **kw)

def gen_ffn(cfg, grp):
    k = S1(False, grp, cfg); p = k.p
    ACC, SACC, CS, TMP = 64, 36, 48, 164
    k.XR = [vr(r, 4) for r in ([36, 40, 44, 164, 168, 172] if grp == 0 else [144, 148, 152, 156, 168, 172])]
    STR = [160, 162, 24, 28, 30, 4]
    tiles = list(range(6)) if grp == 0 else [10, 6, 7, 8, 9]
    KT = cfg['KT']; LK = cfg.get('LK', 18)
    k.head()
    k.pf_code(); k.pf_tlb()
    if cfg.get('hs', 1): k.st_load()
    k.pf_setup()
    I(p, 's_mov_b32 s3, 896')
    for (e, a, b) in cfg.get('pfs', [(-1, 1, 2), (0, 2, 4), (2, 4, 7)]):
        if e == -1: k.pf_phase(a, b, dead=-900)
    if cfg.get('pfC', 4) == -1: k.pf_w2(dead=-890)
    k.pump(limit=cfg.get('first', 2), at=-800)
    k.setup_b(23)
    if cfg.get('st_c', 2) < 0: k.st_compute()
    def ab(t): return ACC + 16 * (t - 6 * grp)
    def wf(ks): return 16 * (ks % 3)
    def tile_mfma(t, ks):
        f = k.xfrag(t, ks)
        for s in range(4):
            d = vr(ab(t) + 4 * s, 4)
            mf(p, d, ar(wf(ks) + 4 * s, 4), f, d if ks else '0')
    per = 24 if grp == 0 else (20 if cfg.get('hs', 1) else 23)
    posu = [min(ks - min(LK, cfg.get('lk0', 99) + cfg.get('lk1', 3) * ks) / 24.0, KT - cfg.get('csearly', 0) - (cfg.get('lkend', 10) + (13 - ks) * cfg.get('ramp', 17)) / 24.0) for ks in range(14)]
    xfreed = set()
    def xf(pu):
        r = [j for j in range(6) if 2 * j + 2 <= pu and j not in xfreed]
        xfreed.update(r); return r
    assert KT == 12
    ce = cfg.get('csearly', 0)
    KE = KT - ce
    for ks in range(14):
        k.epoch(ks, p.nm - posu[ks] * per, xfree=xf(posu[ks]), plan={11: [2, 3], 12: [4], 13: [5, 6]})
        k.st_hooks(ks, 164)
        if ks == 7: assert 2 in xfreed
        if ks == 11: assert 4 in xfreed
        for m in range(2): k.wfrag(ks, m, wf(ks) + 8 * m)
        if ks < KE:
            for t in tiles: tile_mfma(t, ks)
    assert not k.dmaq
    def epi(t, n, pk):
        a = ab(t); st = STR[n]
        if pk:
            for i in range(0, 16, 2): I(p, f'v_pk_fma_f32 {vr(a+i,2)}, {vr(CS+i,2)}, {vr(st,2)}, {vr(a+i,2)} op_sel_hi:[1,0,1]')
            for i in range(0, 8, 2): I(p, f'v_pk_mul_f32 {vr(a+i,2)}, {vr(a+i,2)}, {vr(a+8+i,2)}')
            for i in range(0, 8, 2): I(p, f'v_pk_mul_f32 {vr(a+i,2)}, {vr(a+i,2)}, {vr(st,2)} op_sel:[0,1]')
        else:
            for i in range(16): I(p, f'v_fmac_f32 v{a+i}, v{CS+i}, v{st}')
            for i in range(8): I(p, f'v_mul_f32 v{a+i}, v{a+i}, v{a+8+i}')
            for i in range(8): I(p, f'v_mul_f32 v{a+i}, v{a+i}, v{st+1}')
        for i in range(4): I(p, f'v_cvt_pk_bf16_f32 v{a+8+i}, v{a+2*i}, v{a+2*i+1}')
        I(p, f'buffer_store_dwordx4 {vr(a+8,4)}, v{k.V_ST}, s[24:27], s46 offen offset:{256*t} {cfg["st_flags"]}', wr=[('tok_vq', 0)], dead=p.nm + 20 + 30 * n)
    nb = cfg.get('tab_after', 1)
    for j in xf(99): k.pending_free.append((('tok_xrd', j), ('tok_xfree', j)))
    def tab_reads():
        k.ep0 = None
        if cfg.get('thin', 1): p.dense_from = p.nm + cfg.get('td%d' % grp, 0)
        p.slack = cfg.get('sl%d' % grp, 0)
        for q in range(4):
            I(p, f'ds_read_b128 {vr(CS+4*q,4)}, v{k.V_CSA} offset:{16*q}', rd=[('tok_tab', 0)], wr=[('tok_lr', 0)], dead=k.lastbar + 2)
        for q, tt in enumerate(tiles):
            I(p, f'ds_read_b64 {vr(STR[q],2)}, v{k.V_TABR} offset:{128*tt}', rd=[('tok_tab', 0)], wr=[('tok_lr', 0)], dead=k.lastbar + 3 + q)
        for q, n in enumerate(range(7, cfg['ne'])): k.early_b(n, k.lastbar + 1 + 4 * q)
    seq = [(t, ks) for ks in range(KE, KT) for t in tiles if t != 10] + [(t, ks) for t in tiles if t != 10 for ks in range(KT, 14)]
    if grp:
        for ks in range(KE, 14): tile_mfma(10, ks)
        for q in range(4):
            k.masked(f'ds_write_b128 v{k.V_CSA}, {vr(ab(10)+4*q,4)} offset:{16*q}', 62, wr=[('tok_tw', 0)], dead=p.nm + 3)
        k.barrier(rd=[('tok_tw', 0)], wr=[('tok_tab', 0)], look=-4)
        tab_reads()
    nbm = ((4 if cfg.get('hs', 1) else 7) * (14 - KE) + 4 + 3) // 4 + cfg.get('nbx', 0)
    for n, (t, ks) in enumerate(seq):
        if (not grp) and n == nbm:
            k.barrier(wr=[('tok_tab', 0)], look=0); tab_reads()
        tile_mfma(t, ks)
    npk = 0
    for n, t in enumerate(tiles): epi(t, n, n >= len(tiles) - npk)
    k.barrier(wr=[('tok_vq', 0)], rd=[('tok_xrd', 6), ('tok_xrd', 5), ('tok_lr', 0)] + [('tok_bd', n) for n in range(2 + cfg.get('s2_npre', 2))], look=-400)
    p.ops[-1].text = '; (end barrier is executed at the start of stage 2)'
    if grp: I(p, 'v_mov_b32 v28, v164\nv_mov_b32 v29, v165', rd=[('tok_ep', 0)])
    return k

def gen_att(cfg, grp):
    k = S1(True, grp, cfg); p = k.p
    ACC, SACC, CSQ, CSV, BIAS, MSK, KADR = 64, 36, 48, 46, 160, 172, 25
    V_ST, V_EX, V_NM4, V_CV = 44, 45, 8, 24
    k.XR = [vr(r, 4) for r in ([36, 40, 80, 84, 60, 56, 52] if grp == 0 else [36, 40, 136, 140, 144, 148])]
    tiles = [3, 0, 1, 2] if grp == 0 else [6, 5, 4]
    qt = [1, 2, 3] if grp == 0 else [6, 5, 4]
    tb = 0 if grp == 0 else 4
    def ka(t, s=0): return (ACC + 24 * (t - tb) + 4 * s) if t >= tb else 152
    def va(t, s=0): return ACC + 24 * (t - tb) + 8 + 4 * s
    def qa(t, s=0): return ACC + 24 * (t - tb) + 16 + 4 * s
    VPK = [qa(0), 36] if grp == 0 else [136, 144]
    def vp(s, t): return VPK[s] + 2 * (t - (0 if grp == 0 else 3))
    def wf(ks, m): return 24 * (ks % 2) + 8 * m
    LK = cfg.get('LKA', 16)
    if cfg.get('thin', 1): p.dense_from = 9999
    k.head()
    k.pf_code(); k.pf_tlb()
    if cfg.get('hs', 1): k.st_load()
    k.pf_setup()
    I(p, 's_mov_b32 s3, 896')
    for (e, a, b) in cfg.get('pfs', [(-1, 1, 2), (0, 2, 4), (2, 4, 7)]):
        if e == -1: k.pf_phase(a, b, dead=-900)
    if cfg.get('pfC', 4) == -1: k.pf_w2(dead=-890)
    k.pump(limit=cfg.get('first_a', 3), at=-800)
    k.setup_b(V_ST)
    I(p, 'v_lshlrev_b32 v4, 2, v3\nv_sub_u32 v4, v2, v4\nv_mov_b32 v5, 0xff800000')
    for r in range(4):
        I(p, f"""v_subrev_u32 v6, {r}, v4
                 v_and_b32 v7, 0x80000001, v6
                 v_cmp_eq_u32 vcc, 0, v7
                 v_cndmask_b32 v{BIAS+r}, v5, 0, vcc
                 v_cmp_eq_u32 vcc, 0x80000000, v7
                 v_cndmask_b32 v{BIAS+4+r}, v5, 0, vcc""")
        if grp == 0: I(p, f'v_cndmask_b32 v{BIAS+8+r}, v{BIAS+4+r}, v5, s[54:55]')
    I(p, """v_and_b32 v6, 1, v2
            v_cmp_eq_u32 vcc, 1, v6
            v_mov_b32 v7, 0xffff
            v_mov_b32 v8, 0xffff0000
            v_cndmask_b32 v7, v7, v8, vcc
            v_lshl_add_u32 v6, v3, 2, v6""")
    for b in range(2):
        I(p, f"""v_add_u32 v8, {2*b}, v6
                 v_cmp_gt_u32 vcc, v8, v2
                 v_cndmask_b32 v{MSK+b}, 0, v7, vcc
                 v_cndmask_b32 v{MSK+2+b}, v7, 0, vcc
                 v_subrev_u32 v9, 16, v8
                 v_cndmask_b32 v8, v8, v9, vcc
                 v_lshlrev_b32 v8, 2, v8
                 v_add_u32 v{KADR+b}, 1024, v8""")
    I(p, f"""v_lshlrev_b32 v{V_NM4}, 4, v3
             s_lshl_b32 s52, s29, 7
             s_add_u32 s52, s52, {CVL}
             v_lshl_add_u32 v{V_CV}, v2, 3, s52
             s_lshl_b32 s52, s29, 11
             s_add_u32 s52, s52, {LA + 14336}
             v_lshl_add_u32 v{V_EX}, v1, 4, s52
             s_mov_b32 s38, 0
             s_mov_b32 s39, 0xffff0000""")
    def m_kq(t, ks, f):
        for s in range(2):
            d = vr(ka(t, s), 4); mf(p, d, ar(wf(ks, 1) + 4 * s, 4), f, d if ks else '0')
        if t:
            for s in range(2):
                d = vr(qa(t, s), 4); mf(p, d, ar(wf(ks, 0) + 4 * s, 4), f, d if ks else '0')
    def m_v(t, ks, f):
        for s in range(2):
            d = vr(va(t, s), 4); mf(p, d, f, ar(wf(ks, 2) + 4 * s, 4), d if ks else '0')
    for ks in range(14):
        nl = cfg.get('att_loop', 4)
        k.epoch(ks, min(LK, cfg.get('lk0', 99) + cfg.get('lk1', 3) * ks), plan={e: [n for n in v if n < nl] for e, v in {11: [2], 12: [3, 4], 13: [5, 6, 7]}.items()})
        k.st_hooks(ks, 168)
        for m in (1, 0, 2): k.wfrag(ks, m, wf(ks, m))
        fs = {}
        for n, t in enumerate(tiles):
            fs[t] = k.xfrag(t, ks)
            m_kq(t, ks, fs[t])
            if ks < 13 or n == 0: m_v(t, ks, fs[t])
            if ks == 13 and n == 0 and grp:
                for q, r in enumerate((qa(6), qa(6, 1), ka(6), ka(6, 1))):
                    k.masked(f'ds_write_b128 v{k.V_CSA}, {vr(r,4)} offset:{16*q}', 62, wr=[('tok_tw', 0)], dead=p.nm + 3)
                for s in range(2):
                    k.masked(f'ds_write_b32 v{V_CV}, v{va(6,s)+3} offset:{4*s}', 38, wr=[('tok_tw', 0)], dead=p.nm + 4)
        if ks == 13:
            k.barrier(rd=([('tok_tw', 0)] if grp else []) + [('tok_xrd', 6), ('tok_xrd', 5)], wr=[('tok_tab', 0)], look=2 if grp else 4)
            for t in tiles[1:]: m_v(t, ks, fs[t])
    assert not k.dmaq
    for q in range(4): I(p, f'ds_read_b128 {vr(CSQ+4*q,4)}, v{k.V_CSA} offset:{16*q}', rd=[('tok_tab', 0)], wr=[('tok_lr', 0)], dead=k.lastbar + 1)
    CSVP = [CSV, 22]
    for s in range(2): I(p, f'ds_read2_b32 {vr(CSVP[s],2)}, v{V_CV} offset0:{s} offset1:{s}', rd=[('tok_tab', 0)], wr=[('tok_lr', 0)], dead=k.lastbar + 1)
    NMR = [4, 6, 14, 20]; NM4 = [16, 28, 32, 16]
    ebq = []
    def eb1():
        if ebq:
            n = ebq.pop(0); bdma(p, n, rd=[('tok_tab', 0)])
    def fix(base, cs, nm):
        for i in range(0, 8, 2): I(p, f'v_pk_fma_f32 {vr(base+i,2)}, {vr(cs+i,2)}, {vr(nm,2)}, {vr(base+i,2)}')
        for i in range(4): I(p, f'v_cvt_pk_bf16_f32 v{base+i}, v{base+2*i}, v{base+2*i+1}')
    def fix_v(t, n):
        nm = NM4[n]
        for s in range(2):
            a = va(t, s)
            for i in (0, 2): I(p, f'v_pk_fma_f32 {vr(a+i,2)}, {vr(nm+i,2)}, {vr(CSVP[s],2)}, {vr(a+i,2)}')
            for i in range(2): I(p, f'v_cvt_pk_bf16_f32 v{vp(s,t)+i}, v{a+2*i}, v{a+2*i+1}')
    for n, t in enumerate(tiles):
        I(p, f'ds_read2_b32 {vr(NMR[n],2)}, v{k.V_TABR} offset0:{16*t} offset1:{16*t}', rd=[('tok_tab', 0)], wr=[('tok_lr', 0)], dead=k.lastbar + 1)
    def rd_nm4(n): I(p, f'ds_read_b128 {vr(NM4[n],4)}, v{V_NM4} offset:{64*tiles[n]}', rd=[('tok_tab', 0)], wr=[('tok_lr', 0)], dead=k.lastbar + 2)
    rd_nm4(0); rd_nm4(1)
    p.tail_fixed = len(p.ops)
    for n, t in enumerate(tiles):
        fix(ka(t), CSQ + 8, NMR[n])
        if n == 0:
            fix_v(t, 0)
            if grp == 0:
                I(p, f'ds_write_b128 v{V_EX}, {vr(ka(3),4)}', rd=[('tok_tab', 0)], wr=[('tok_ex', 0)])
                for s in range(2): I(p, f'ds_write_b64 v{V_EX}, {vr(vp(s,3),2)} offset:{1024 + 8*s}', rd=[('tok_tab', 0)], wr=[('tok_ex', 0)])
        if t: fix(qa(t), CSQ, NMR[n])
        eb1()
    k.barrier(rd=[('tok_ex', 0)] if grp == 0 else R('v', qa(4), 4), wr=[('tok_exr', 0)], look=0)
    if grp:
        I(p, f'ds_read_b128 {vr(ka(3),4)}, v{V_EX}', rd=[('tok_exr', 0)], wr=[('tok_lr', 0)])
        for s in range(2): I(p, f'ds_read_b64 {vr(vp(s,3),2)}, v{V_EX} offset:{1024 + 8*s}', rd=[('tok_exr', 0)], wr=[('tok_lr', 0)])
    for n, t in enumerate(qt):
        T = CSQ + 5 * n
        I(p, f'ds_read_b32 v{T}, v{k.V_TABR} offset:{1024+64*t}', rd=[('tok_tab', 0)], wr=[('tok_lr', 0)])
        for b in range(2): I(p, f'ds_read_b32 v{T+1+b}, v{KADR+b} offset:{64*t}', rd=[('tok_tab', 0)], wr=[('tok_lr', 0)])
    for n in range(2, len(tiles)): rd_nm4(n)
    for t in qt:
        mf(p, vr(qa(t, 1), 4), vr(ka(t), 4), vr(qa(t), 4), vr(BIAS, 4))
        mf(p, vr(ka(t, 1), 4), vr(ka(t - 1), 4), vr(qa(t), 4), vr(BIAS + (8 if t == 1 else 4), 4))
    for n, t in enumerate(tiles[1:]): fix_v(t, n + 1); eb1()
    SC = 0.18898223650461362 * 1.4426950408889634
    def softmax(t, n):
        a, b, T = qa(t, 1), ka(t, 1), CSQ + 5 * n
        return f"""v_mul_f32 v{T}, {f32(SC)}, v{T}
                 v_mul_f32 v{T+3}, v{T}, v{T+1}
                 v_mul_f32 v{T+4}, v{T}, v{T+2}
                 v_max3_f32 v{a}, v{a}, v{a+1}, v{b}
                 v_max3_f32 v{a+2}, v{a+2}, v{a+3}, v{b+2}
                 v_max_f32 v{a}, v{a}, v{b+1}
                 v_max_f32 v{a+2}, v{a+2}, v{b+3}
                 v_mul_f32 v{a}, v{a}, v{T+3}
                 v_mul_f32 v{a+2}, v{a+2}, v{T+4}
                 v_max_f32 v{a+1}, v{a}, v{a+2}
                 v_max_f32 v{a+3}, v{a}, v{a+2}
                 v_permlane32_swap_b32 v{a+1}, v{a+3}
                 v_max_f32 v{b}, v{a+1}, v{a+3}
                 v_max_f32 v{b+1}, v{a+1}, v{a+3}
                 v_permlane16_swap_b32 v{b}, v{b+1}
                 v_max_f32 v{b}, v{b}, v{b+1}
                 v_sub_f32 v{a}, v{a}, v{b}
                 v_sub_f32 v{a+2}, v{a+2}, v{b}
                 v_exp_f32 v{a}, v{a}
                 v_exp_f32 v{a+2}, v{a+2}
                 v_add_f32 v{a+1}, v{a}, v{a+2}
                 v_add_f32 v{a+3}, v{a}, v{a+2}
                 v_permlane32_swap_b32 v{a+1}, v{a+3}
                 v_mul_f32 v{a}, v{a}, v{T+1}
                 v_mul_f32 v{a+2}, v{a+2}, v{T+2}
                 v_add_f32 v{b}, v{a+1}, v{a+3}
                 v_add_f32 v{b+1}, v{a+1}, v{a+3}
                 v_permlane16_swap_b32 v{b}, v{b+1}
                 v_add_f32 v{b}, v{b}, v{b+1}
                 v_rcp_f32 v{b}, v{b}
                 v_mul_f32 v{a}, v{a}, v{b}
                 v_mul_f32 v{a+2}, v{a+2}, v{b}
                 v_cvt_pk_bf16_f32 v{b+2}, v{a}, v{a}
                 v_cvt_pk_bf16_f32 v{b+3}, v{a+2}, v{a+2}
                 v_and_b32 v{a}, v{b+2}, v{MSK}
                 v_and_b32 v{a+1}, v{b+3}, v{MSK+1}
                 v_and_b32 v{a+2}, v{b+2}, v{MSK+2}
                 v_and_b32 v{a+3}, v{b+3}, v{MSK+3}""".split('\n')
    L = [softmax(t, n) for n, t in enumerate(qt)]
    for i in range(len(L[0])):
        for q in range(3): I(p, L[q][i])
        if i % 12 == 5: eb1()
    tail = p.ops[p.tail_fixed:]; p.ops = p.ops[:p.tail_fixed]
    m0 = len(p.ops)
    for n in range(cfg.get('att_loop', 4), cfg['ne']): bdma(p, n, rd=[('tok_tab', 0)])
    bops = p.ops[m0:]; p.ops = p.ops[:m0]
    units, cur = [], []
    for o in bops:
        cur.append(o)
        if o.kind == 'dma': units.append(cur); cur = []
    units[-1] += cur
    step = len(tail) * cfg.get('att_sp', 0.9) / len(units)
    nxt = 0.0
    for i, o in enumerate(tail):
        if units and i >= nxt:
            u = units.pop(0); p.ops += u; nxt += step
        p.ops.append(o)
    for u in units: p.ops += u
    for i, o in enumerate(p.ops): o.idx = i
    for t in qt:
        for s in range(2): mf(p, vr(va(t, s), 4), vr(vp(s, t - 1), 4), vr(qa(t, 1), 4), '0')
    for t in qt:
        a, d = va(t), qa(t)
        for i in range(4): I(p, f'v_cvt_pk_bf16_f32 v{d+i}, v{a+2*i}, v{a+2*i+1}')
        I(p, f'buffer_store_dwordx4 {vr(d,4)}, v{V_ST}, s[24:27], s46 offen offset:{256*(t-1)} {cfg["st_flags"]}', wr=[('tok_vq', 0)])
    k.barrier(wr=[('tok_vq', 0)], rd=[('tok_lr', 0)] + [('tok_bd', n) for n in range(2 + cfg.get('s2_npre', 2))], look=-99)
    p.ops[-1].text = '; (end barrier is executed at the start of stage 2)'
    if grp: I(p, 'v_mov_b32 v28, v168\nv_mov_b32 v29, v169')
    return k

FULL = [1]
def flag_off():
    if FULL[0]:
        return """v_lshl_add_u32 v7, v1, 3, s101
  v_cmp_gt_u32 vcc, 16, v1
  s_nop 1
  v_cndmask_b32 v7, -16, v7, vcc"""
    return """v_mov_b32 v7, s101
  v_cmp_eq_u32 vcc, 0, v1
  s_nop 1
  v_cndmask_b32 v7, -16, v7, vcc"""
SLOW = []
def nonce_check(tag, V=28, Z=6):
    SLOW.append(f"""L_pn{tag}:
  s_mov_b32 s65, 0
L_po{tag}:
  v_mov_b32 v{Z}, 0
  s_sleep 4
  global_load_dwordx2 v[{V}:{V+1}], v{Z}, s[60:61] sc1
  s_add_u32 s65, s65, 1
  s_waitcnt vmcnt(0)
  v_cmp_ne_u32 vcc, 0, v{V}
  s_cmp_ge_u32 s65, 0x40000
  s_cbranch_scc1 L_ps{tag}
  s_nop 3
  s_cbranch_vccz L_po{tag}
  s_branch L_ps{tag}
""")
    return f"""v_cmp_ne_u32 vcc, 0, v{V}
  s_nop 4
  s_cbranch_vccz L_pn{tag}
L_ps{tag}:"""
PUB = 'buffer_store_dwordx2 v[28:29], v7, s[24:27], 0 offen sc1'

def gen_s2(cfg, sg):
    p = Prog(vm_lat=cfg.get('s2_lat', 900), gap=cfg.get('s2_gap', 24))
    N = 16 if sg else 19
    ACC, NB, AD = 32, 10, 3
    AR = [vr(176 - 8 * AD + 4 * i, 4) for i in range(2 * AD)]
    def win(n):
        off = rowaddr(ROWSEQ[n]) - LA
        w = 0 if off < 55296 else (1 if off < 55296 + 65536 else 2)
        return w, off - (0, 55296, 120832)[w]
    def fread(n, tok, **kw):
        w, off = win(n)
        for ct in range(4):
            for e in range(2):
                I(p, f'ds_read_b64_tr_b16 {fr(n, 4*ct+2*e, 2)}, v{16+4*w+ct} offset:{off + e*2048}', rd=[tok], wr=[('tok_rd', n)], **kw)
    def bar(name, rd=(), **kw):
        p.add('s_barrier', 'bar', list(rd), [('tok_bar', 0), ('tok_b', name), ('tok_vq', 0)], **kw)
        return ('tok_b', name)
    def bd(n, rd=()): bdma(p, n, rd=rd)
    t0 = ('tok_b', 'entry')
    p.add('; (stage-1 stores outstanding)', 'vms', [], [('tok_ack', 0), ('tok_vq', 0)])
    ne = cfg['ne']
    if 'p1' in cfg and not sg: p.add('s_setprio 0', 'salu', [], [])
    tr_setup(p, 16, LA, 4)
    for w, o in ((1, 55296), (2, 120832)):
        for ct in range(4): I(p, f'v_add_u32 v{16+4*w+ct}, {o}, v{16+ct}')
    if sg: p.add('s_setprio 3', 'salu', [], [])
    if sg: p.add(flag_off(), 'valu', [('v', 1)], [('v', 7), ('vcc', 0)])
    I(p, f's_lshl_b32 s47, s30, 2\ns_add_u32 s47, s47, {PFL}\nv_mov_b32 v30, s47\nv_mov_b32 v31, 0\nv_xor_b32 v0, 4, v30')
    def publish(bp):
        if sg: p.add(nonce_check('a') + '\n  s_cmp_lg_u32 s30, 6\n  s_cbranch_scc1 L_pea\n  ' + PUB + '\nL_pea:', 'salu', [bp, ('s', 30)] + R('v', 6, 2) + R('v', 28, 2), R('v', 6, 1) + R('v', 28, 2) + [('tok_vq', 0), ('tok_nonce', 0), ('vcc', 0)])
    be = bar('entry', [('tok_ack', 0)] if cfg.get('pe', 1) else [])
    if cfg.get('pe', 1): publish(be)
    for n in range(ne, 11): bd(n)
    mid = 0
    npre = cfg.get('s2_npre', 2)
    for n in range(2, 2 + mid): fread(n, t0)
    if mid:
        bm = bar('m', [('tok_rd', n) for n in range(2, 2 + mid)])
        for n in range(11, 11 + mid): bd(n, [bm])
    for n in range(2, 2 + npre): fread(n, t0)
    mark0 = len(p.ops)
    VXO, VAO, XR = 13, 144, 4
    I(p, f"""s_lshl_b32 s45, s66, 1
            s_add_u32 s45, s45, s31
            s_lshl_b32 s45, s45, 5
            s_lshl_b32 s47, s32, 5
            s_lshl_b32 s46, s67, 7
            s_add_u32 s46, s46, s47
            v_mul_u32_u24 v40, {CH}, v3
            s_mov_b32 s47, 47663
            s_mov_b32 s52, 44621""")
    for t in range(2):
        I(p, f"""v_add_u32 v44, s45, v2
                 v_add_u32 v44, {16*t}, v44
                 v_mul_lo_u32 v45, v44, s47
                 v_lshrrev_b32 v45, 23, v45
                 v_mul_u32_u24 v46, 176, v45
                 v_sub_u32 v46, v44, v46
                 v_mul_u32_u24 v41, 171, v45
                 v_min_u32 v42, 1873, v41
                 v_add_u32 v42, v42, v46
                 v_sub_u32 v41, v42, v41
                 v_cmp_gt_u32 vcc, 171, v41
                 v_mul_u32_u24 v41, 896, v42
                 v_lshl_add_u32 v41, v3, 3, v41
                 v_add_u32 v41, s46, v41
                 v_cndmask_b32 v{VXO+t}, -16, v41, vcc""")
        if sg:
            I(p, """v_min_u32 v42, 2047, v42
                    v_mul_lo_u32 v45, v42, s52
                    v_lshrrev_b32 v45, 22, v45
                    v_mul_u32_u24 v46, 94, v45
                    v_min_u32 v46, 1953, v46
                    v_sub_u32 v42, v42, v46
                    v_mul_u32_u24 v45, 96, v45
                    v_add_u32 v44, v42, v45""")
        I(p, f'v_lshl_add_u32 v{VAO+t}, v44, 4, v40')
    I(p, f"""s_mul_i32 s53, s32, {0 if sg else 19*4*CH}
            s_add_u32 s53, s53, {0 if sg else 64*CH}
            s_add_u32 s54, s53, {N*4*CH}
            s_mul_i32 s55, s42, {4*CH}
            s_add_u32 s55, s55, s53
            s_mov_b32 s18, 1835008
            s_mov_b32 s19, 0x20000
            s_mov_b32 s20, s24
            s_mov_b32 s21, s25
            s_mov_b32 s22, {AH_BYTES}
            s_mov_b32 s23, 0x20000""")
    if sg:
        mark1 = len(p.ops)
        G(p, """s_lshl_b32 s47, s66, 6
                s_mul_i32 s48, s47, 47663
                s_lshr_b32 s48, s48, 23
                s_mul_i32 s59, s48, 5
                s_cmp_eq_u32 s48, 11
                s_cselect_b32 s59, 63, s59
                s_sub_u32 s59, s47, s59
                s_mul_i32 s50, s59, 44621
                s_lshr_b32 s50, s50, 22
                s_add_u32 s47, s47, 63
                s_mul_i32 s49, s47, 47663
                s_lshr_b32 s49, s49, 23
                s_mul_i32 s59, s49, 5
                s_cmp_eq_u32 s49, 11
                s_cselect_b32 s59, 63, s59
                s_sub_u32 s59, s47, s59
                s_min_u32 s59, s59, 2047
                s_mul_i32 s51, s59, 44621
                s_lshr_b32 s51, s51, 22
                s_mul_i32 s48, s48, 14
                s_mul_i32 s49, s49, 14
                s_sub_u32 s49, s49, 14
                s_lshl_b32 s50, s50, 2
                s_add_u32 s50, s50, 140
                s_lshl_b32 s51, s51, 2
                s_add_u32 s51, s51, 136""")
        I(p, f"""v_min_u32 v47, 35, v1
                 v_mov_b32 v15, s48
                 v_mov_b32 v48, s49
                 v_cmp_le_u32 vcc, 14, v47
                 v_cndmask_b32 v15, v15, v48, vcc
                 v_mov_b32 v48, s50
                 v_cmp_le_u32 vcc, 28, v47
                 v_cndmask_b32 v15, v15, v48, vcc
                 v_mov_b32 v48, s51
                 v_cmp_le_u32 vcc, 32, v47
                 v_cndmask_b32 v15, v15, v48, vcc
                 v_add_u32 v15, v15, v47
                 v_lshlrev_b32 v15, 7, v15
                 v_add_u32 v15, {FLG}, v15
                 s_mov_b32 s48, 0x0fffffff
                 s_mov_b32 s49, 0
                 s_mov_b32 s50, 0xf0000000
                 s_mov_b32 s51, 15""")
    late_setup = p.ops[mark0:]; p.ops = p.ops[:mark0]
    nfl = 0
    if sg:
        nfl = len(late_setup) - (mark1 - mark0)
        late_setup = late_setup[mark1 - mark0:] + late_setup[:mark1 - mark0]
    def drip(k):
        for _ in range(k):
            if late_setup:
                o = late_setup.pop(0); o.idx = len(p.ops); p.ops.append(o)
    VW = 0
    I(p, 'ds_write_b32 v30, v31 offset:64', wr=[('tok_pfz', 0)])
    def poll(tag, mask, first):
        ld = 'buffer_load_dwordx2 v[4:5], v15, s[24:27], 0 offen ' + cfg.get('poll_fl', 'sc1') + '\n  s_waitcnt vmcnt(0)\n  '
        txt = f"""s_mov_b32 s65, 0
  {ld if first else ''}
L_pl{tag}:
  v_cmp_ne_u64 vcc, v[4:5], v[28:29]
  s_add_u32 s65, s65, 1
  s_cmp_ge_u32 s65, 0x40000
  s_cbranch_scc1 L_pd{tag}
  s_nop 1
  s_and_b64 vcc, vcc, s[{mask}:{mask+1}]
  s_cbranch_scc0 L_pd{tag}
  s_sleep {cfg.get('poll_sleep', 3)}
  {ld}s_branch L_pl{tag}
L_pd{tag}:"""
        p.add(txt, 'salu', [('v', 15), ('v', 28), ('v', 29), ('v', 4), ('v', 5), ('tok_nonce', 0)] + R('s', mask, 2),
              [('v', 4), ('v', 5), ('vcc', 0), ('tok_poll', tag), ('tok_vq', 0)])
        return ('tok_poll', tag)
    bp = bar('p', [('tok_ack', 0), ('tok_pfz', 0)] + [('tok_rd', n) for n in range(2, 2 + npre)])
    if not cfg.get('pe', 1): publish(bp)
    p.add('s_waitcnt lgkmcnt(0)', 'salu', [bp], R('s', 16, 2))
    def pflag(val, tag, **kw):
        p.add(f"""L_pf{tag}{sg}:
  v_readfirstlane_b32 s64, v31
  s_nop 1
  s_cmp_ge_u32 s64, {val}
  s_cbranch_scc1 L_pfd{tag}{sg}
  ds_read_b32 v31, v30 offset:64
  s_waitcnt lgkmcnt(0)
  s_branch L_pf{tag}{sg}
L_pfd{tag}{sg}:""", 'rfl', [('v', 30), ('v', 31)], [('v', 31), ('s', 64), ('tok_pfo', tag), ('tok_vq', 0)], **kw)
        return ('tok_pfo', tag)
    VV = 146
    def setf(val, rd, **kw):
        I(p, f'v_mov_b32 v{VV}, {val}')
        I(p, f'ds_write_b32 v{VW}, v{VV} offset:64', rd=rd, wr=[('tok_pfz', 0), ('tok_vq', 0)], **kw)
    def getf(**kw): I(p, 'ds_read_b32 v31, v30 offset:64', rd=[('tok_pfz', 0)], wr=[('tok_vq', 0)], **kw)
    quick = 1
    rq = list(range(2 + npre, ne))
    first = list(range(11, min(N, 11 + npre)))
    for n in first:
        bd(n, [bp])
        for _ in range(-(-len(rq) // max(1, len(first)))  if n != first[-1] else 99):
            if rq and (len(rq) > 0): fread(rq.pop(0), t0)
            if n != first[-1] and _ >= 1: break
    while rq: fread(rq.pop(0), t0)
    pq = cfg.get('pq', 0)
    if sg and pq: drip(nfl)
    b2 = bar('r', [('tok_rd', n) for n in range(2 + npre, ne)] + [('tok_bd', n) for n in range(ne, 10)])
    for n in range(ne, 10): fread(n, b2)
    rest = list(range(11 + npre, min(N, 9 + ne)))
    post = list(range(9 + ne, N))
    per = (len(late_setup) + len(rest) - 1) // max(1, len(rest))
    if sg:
        drip({0: 999, 1: 0, 2: 30}[pq])
        I(p, 'buffer_load_dwordx2 v[4:5], v15, s[24:27], 0 offen sc1', rd=[('tok_nonce', 0)], wr=[('tok_vq', 0)])
    for n in rest:
        bd(n, [b2]); drip(per)
    drip(999)
    bgo = bar(4, ([poll(0, 48, not quick)] if sg else []) + [('tok_rd', n) for n in range(ne, 10)])
    go = poll(1, 50, False) if sg else bgo
    if sg: p.add('s_setprio 0', 'salu', [], [])
    if cfg.get('prio'):
        if sg: p.add('s_setprio 3', 'salu', [], [])
        else: p.add(f's_cmp_eq_u32 s32, 0\n  s_cbranch_scc1 L_np\n  s_setprio 1\n  s_cmp_eq_u32 s32, 1\n  s_cbranch_scc1 L_np\n  s_setprio 2\nL_np:' if cfg['prio'] == 2 else 's_nop 0', 'salu', [], [])
    p.fixed = len(p.ops)
    def aload(n):
        for t in range(2):
            I(p, f'v_add_u32 v{8+2*t}, s55, v{VAO+t}', rd=[go])
            I(p, f'buffer_load_dwordx4 {AR[(2*n+t) % (2*AD)]}, v{8+2*t}, s[20:23], 0 offen sc1', rd=[go], wr=[('tok_vq', 0)], dead=(n - AD) * 8 + 4 * t + 5)
        G(p, f's_add_u32 s55, s55, {4*CH}\ns_cmp_eq_u32 s55, s54\ns_cselect_b32 s55, s53, s55')
    for n in range(AD): aload(n)
    for n in range(N):
        if n == 3:
            for t in range(2):
                I(p, f'buffer_load_dwordx2 {vr(XR+2*t,2)}, v{VXO+t}, s[12:15], 0 offen', wr=[('tok_vq', 0)], dead=p.nm + 2)
        if quick:
            if post and n < 3: bdma(p, post.pop(0), rd=[bgo], early=p.nm, dead=p.nm + 1)
            nl = 0 if ne == 10 else 5
            if n == nl: setf(3, [('tok_bd', q) for q in range(NB, N)], early=p.nm - 1, dead=p.nm + 0.5)
            if n == nl + 1: getf(early=p.nm - 2, dead=p.nm)
            if n == nl + 2:
                land = pflag(3, 'l', early=p.nm - 3, dead=p.nm - 1)
                for q in range(NB, min(N, NB + nl + 2)): fread(q, land, dead=min(p.nm + 10 + 4 * (q - NB), 8 * q - 8))
        if n == 11: setf(4, [('tok_rd', q) for q in range(NB, NB + 3)], early=p.nm, dead=p.nm + 2)
        if n == N - 2: getf(early=p.nm, dead=p.nm + 2)
        for t in range(2):
            for ct in range(4):
                d = vr(ACC + 16 * t + 4 * ct, 4)
                mf(p, d, fr(n, 4 * ct, 4), AR[(2 * n + t) % (2 * AD)], d if n else '0')
        if n + AD < N: aload(n + AD)
        if n + NB < N and n >= nl + 2: fread(n + NB, land if quick else bgo, dead=p.nm + 10)
    I(p, f"""s_lshl_b32 s47, s31, 11
            v_lshl_add_u32 v12, v1, 4, s47
            v_lshl_add_u32 v16, v1, 4, s76""")
    fre = pflag(4, 'c', early=p.nm - 6)
    for c in range(1, 4):
        for t in range(2):
            I(p, f'ds_write_b128 v16, {vr(ACC+16*t+4*c,4)} offset:{rowaddr(ROWSEQ[9+c]) + 1024*t}', rd=[fre], wr=[('tok_xw', 0)])
    XU, E, RX = 64, 72, 80
    for i in range(4):
        I(p, f'v_lshlrev_b32 v{XU+2*i}, 16, v{XR+i}\nv_and_b32 v{XU+2*i+1}, 0xffff0000, v{XR+i}')
    def saddr(src, c): return rowaddr(ROWSEQ[9 + c]) + src * 4096
    if sg:
        for q in range(3): I(p, f'v_add_u32 v{17+q}, {saddr(q, q ^ 3)}, v12')
    else:
        tab = [[saddr(src, src ^ kq) for src in ((kq + 1) % 3, (kq + 2) % 3, 3)] for kq in range(3)]
        for q in range(3):
            G(p, f"""s_mov_b32 s{48+q}, {tab[0][q]}
                     s_cmp_eq_u32 s32, 1
                     s_cselect_b32 s{48+q}, {tab[1][q]}, s{48+q}
                     s_cmp_eq_u32 s32, 2
                     s_cselect_b32 s{48+q}, {tab[2][q]}, s{48+q}""")
            I(p, f'v_add_u32 v{17+q}, s{48+q}, v12')
    b6 = bar(6, [('tok_xw', 0)], early=1e6)
    own = [ACC, ACC + 2, ACC + 16, ACC + 18]
    for q in range(3):
        for t in range(2): I(p, f'ds_read_b128 {vr(RX+8*q+4*t,4)}, v{17+q} offset:{1024*t}', rd=[b6])
    if sg:
        for i in range(0, 8, 2): I(p, f'v_pk_add_f32 {vr(RX+i,2)}, {vr(RX+i,2)}, {vr(RX+8+i,2)}')
        for i in range(0, 8, 2): I(p, f'v_pk_add_f32 {vr(RX+i,2)}, {vr(RX+i,2)}, {vr(RX+16+i,2)}')
        S = own
    else:
        for i in range(0, 8, 2): I(p, f'v_pk_add_f32 {vr(RX+i,2)}, {vr(RX+i,2)}, {vr(own[i//2],2)}')
        for i in range(0, 8, 2): I(p, f'v_pk_add_f32 {vr(RX+i,2)}, {vr(RX+i,2)}, {vr(RX+8+i,2)}')
        S = [RX + 16 + i for i in range(0, 8, 2)]
    for i in range(8): I(p, f'v_mul_f32 v{E+i}, {f32(-1.4426950408889634)}, v{RX+i}')
    for i in range(8): I(p, f'v_exp_f32 v{E+i}, v{E+i}')
    for i in range(0, 8, 2): I(p, f'v_pk_mul_f32 {vr(RX+i,2)}, {vr(RX+i,2)}, {vr(S[i//2],2)}')
    for i in range(8): I(p, f'v_add_f32 v{E+i}, 1.0, v{E+i}')
    for i in range(8): I(p, f'v_rcp_f32 v{E+i}, v{E+i}')
    for i in range(0, 8, 2): I(p, f'v_pk_fma_f32 {vr(XU+i,2)}, {vr(RX+i,2)}, {vr(E+i,2)}, {vr(XU+i,2)}')
    for i in range(4): I(p, f'v_cvt_pk_bf16_f32 v{XR+i}, v{XU+2*i}, v{XU+2*i+1}')
    for t in range(2):
        I(p, f'buffer_store_dwordx2 {vr(XR+2*t,2)}, v{VXO+t}, s[16:19], 0 offen {cfg.get("ofl", "")}')
    class K: pass
    k = K(); k.p = p
    return k

def stamp(cfg, region, drain):
    if not cfg['stamp']: return ''
    mv = ''.join(f'  v_mov_b32 v{44+i}, s{82+2*i}\n' for i in range(9))
    return f'''  s_nop 7
{'  s_waitcnt vmcnt(0)' if drain else ''}
  s_memtime s[20:21]
  s_memrealtime s[22:23]
  s_waitcnt lgkmcnt(0)
  s_sub_u32 s20, s20, s78
  s_mov_b32 s16, s24
  s_mov_b32 s17, s25
  s_mov_b32 s18, 0x10000000
  s_mov_b32 s19, 0x20000
  s_lshl_b32 s3, s2, 3
  s_add_u32 s3, s3, s30
  s_lshl_b32 s3, s3, 6
  s_add_u32 s3, s3, {region}
  v_mov_b32 v40, s20
  v_mov_b32 v41, s80
  v_mov_b32 v42, s22
  v_mov_b32 v43, s78
  v_mov_b32 v39, 0
{mv}  s_mov_b64 exec, 1
  buffer_store_dwordx4 v[40:43], v39, s[16:19], s3 offen
  buffer_store_dwordx4 v[44:47], v39, s[16:19], s3 offen offset:16
  buffer_store_dwordx4 v[48:51], v39, s[16:19], s3 offen offset:32
  buffer_store_dword v52, v39, s[16:19], s3 offen offset:48
  s_mov_b64 exec, -1
  s_nop 1
'''

def fin(k, name, cfg):
    n = k.p.nm; st = cfg['stamp']
    mode = 0
    if st: mode = 'bars' if (name.startswith('s2') and cfg.get('bars', 1)) else ('pro' if st == 'pro' else max(1, (n + 6) // 7 - 1))
    if st and 'b1' in cfg and not name.startswith('s2'): mode = ('b', cfg['b1'])
    r = finalize(k.p, name, mode)
    if cfg.get('rt', 1): r = r.replace('s_memtime', 's_memrealtime')
    return r, sum(1 for o in k.p.ops if o.kind == 'bar')

def build(cfg):
    FULL[0] = cfg.get('fullflag', 1)
    hdr = open('cdna_kernels/' + NAME + '.s.ref').read().split('\n')
    out = [l for l in hdr if l.startswith(';') and '@launch' not in l and 'Override launch' not in l and 'grid=ceil' not in l]
    KN = NAME + '_kernel'
    out.append('; @launch grid=(256,1,1) block=(512,1,1) lds=163840')
    out += [
        '; Generated by gen/gen4.py + gen/sched.py (own generator: static MFMA-gap scheduler, waitcnt and wait-state insertion).',
        '; One fused kernel, 256 workgroups x 8 waves, one per CU.',
        ';  stage 1: 168 workgroups gate/up GEMM (LayerNorm folded into the epilogue: rs*(xW - m*colsum(W))), 88 workgroups',
        ';           q/k/v GEMM + windowed softmax attention on MFMA; h and o go to d_ws in MFMA-fragment order (write-through).',
        ';  stage 2: 231 tiles of 64x64: d = h*w_down, s = o*wo, out = x + s*silu(d).',
        ';  hand-offs: sc1 stores drained before a flag store, sc1 polls and loads; flags and row statistics carry a per-launch',
        ';           nonce published through d_debug, so stale words in d_ws are never taken for this launch\'s.']
    s = '\n'.join(out) + '\n.amdgcn_target "amdgcn-amd-amdhsa--gfx950"\n.text\n'
    s += f'.globl {KN}\n.p2align 8\n.type {KN},@function\n{KN}:\n'
    if cfg['stamp']: s += '  s_memtime s[78:79]\n  s_memrealtime s[80:81]\n'
    s += f'''  s_load_dwordx2 s[12:13], s[0:1], 0
  s_load_dwordx2 s[24:25], s[0:1], 72
  s_load_dwordx2 s[4:5], s[0:1], 16
  s_load_dwordx2 s[8:9], s[0:1], 48
  v_lshrrev_b32 v2, 6, v0
  s_cmp_ge_u32 s2, 256
  s_cbranch_scc1 L_end
  v_readfirstlane_b32 s30, v2
  s_and_b32 s56, s2, 7
  s_lshr_b32 s57, s2, 3
  s_cmp_ge_u32 s57, 21
  s_cbranch_scc1 L_att
  s_load_dwordx2 s[16:17], s[0:1], 32
  s_load_dwordx2 s[20:21], s[0:1], 40
  s_load_dwordx2 s[68:69], s[0:1], 8
@FFNPF@  ; ffn: rb = 3*(j>>1) + s/7 ; cb = 7*(j&1) + s%7
  s_mul_i32 s58, s57, 37
  s_lshr_b32 s58, s58, 8
  s_mul_i32 s59, s58, 7
  s_sub_u32 s59, s57, s59
  s_lshr_b32 s60, s56, 1
  s_mul_i32 s60, s60, 3
  s_add_u32 s58, s58, s60
  s_and_b32 s60, s56, 1
  s_mul_i32 s60, s60, 7
  s_add_u32 s59, s59, s60
  s_mul_i32 s33, s58, 176
  s_lshl_b32 s60, s33, 4
  s_mul_i32 s101, s58, 14
  s_add_u32 s101, s101, s59
  s_lshl_b32 s101, s101, 7
  s_add_u32 s101, s101, {FLG}
  s_mul_i32 s33, s58, 171
  s_min_u32 s33, s33, 1873
  s_and_b32 s47, s59, {1 if cfg.get('mix', 0) else 0}
  s_lshl_b32 s43, s59, 1
  s_sub_u32 s43, s43, s47
  s_mul_i32 s46, s43, {8*CH}
  s_lshl_b32 s43, s43, 7
  s_add_u32 s46, s46, {64*CH}
  s_add_u32 s46, s46, s60
'''
    e = stamp(cfg, 0x4000000, False) + '  s_branch L_s2\n'
    def two(gen, nm):
        r0, b0 = fin(gen(cfg, 0), nm + '0', cfg); r1, b1 = fin(gen(cfg, 1), nm + '1', cfg)
        assert b0 == b1, (b0, b1)
        h0, r0 = r0.split('  ;SPLIT\n'); h1, r1 = r1.split('  ;SPLIT\n')
        assert h0 == h1
        return h0 + f'  s_cmp_ge_u32 s30, 4\n  s_cbranch_scc1 L_{nm}1\n  s_branch L_{nm}0\n', f'L_{nm}0:\n' + r0 + e + f'L_{nm}1:\n' + r1 + e
    hf, bf = two(gen_ffn, 'ffn')
    s = s.replace('@FFNPF@', hf[:hf.index('  s_load_dwordx2 s[60:61]')]); s += hf[hf.index('  s_load_dwordx2 s[60:61]'):]
    s += f'''L_att:
  s_load_dwordx2 s[16:17], s[0:1], 8
@ATTPF@  ; att: rb = 11*(j>>2) + (s-21) ; hg = j&3
  s_lshr_b32 s58, s56, 2
  s_mul_i32 s58, s58, 11
  s_add_u32 s58, s58, s57
  s_sub_u32 s58, s58, 21
  s_and_b32 s59, s56, 3
  s_mul_i32 s60, s58, 94
  s_lshl_b32 s101, s58, 2
  s_add_u32 s101, s101, s59
  s_lshl_b32 s101, s101, 7
  s_add_u32 s101, s101, {FLG + 168*128}
  s_min_u32 s60, s60, 1953
  s_sub_u32 s33, s60, 16
  s_mul_i32 s43, s59, 224
  s_mul_i32 s46, s59, {16*CH}
  s_mul_i32 s60, s58, 1536
  s_add_u32 s46, s46, s60
  s_cmp_eq_u32 s58, 0
  s_cselect_b64 s[54:55], -1, 0
  s_lshl_b32 s47, s2, 3
  s_add_u32 s47, s47, s30
  s_cmp_lg_u32 s47, 2040
  s_cbranch_scc1 L_nononce
  s_load_dwordx2 s[36:37], s[0:1], 64
  s_memrealtime s[34:35]
  s_mov_b32 s38, 256
  s_mov_b32 s39, 0x20000
  v_mov_b32 v6, 0
  s_waitcnt lgkmcnt(0)
  s_or_b32 s34, s34, 1
  s_mul_i32 s35, s35, 0x9e3779b1
  s_xor_b32 s35, s35, s34
  v_mov_b32 v4, s34
  v_mov_b32 v5, s35
  s_mov_b64 exec, 1
  buffer_store_dwordx2 v[4:5], v6, s[36:39], 0 offen sc1
  s_mov_b64 exec, -1
L_nononce:
'''
    ha, ba = two(gen_att, 'att')
    s = s.replace('@ATTPF@', ha[:ha.index('  s_load_dwordx2 s[60:61]')]); s += ha[ha.index('  s_load_dwordx2 s[60:61]'):] + bf + ba
    s += '''L_s2:
  s_load_dwordx2 s[16:17], s[0:1], 56
  s_cmp_eq_u32 s70, 0
  s_cbranch_scc1 L_pub
  s_cmp_ge_u32 s30, 6
  s_cbranch_scc1 L_s2s
'''
    r0, b0 = fin(gen_s2(cfg, 0), 's2d', cfg); r1, b1 = fin(gen_s2(cfg, 1), 's2s', cfg)
    assert b0 == b1
    e2 = stamp(cfg, 0x4040000, True) + '  s_endpgm\n'
    s += r0 + e2 + 'L_s2s:\n' + r1 + e2
    s += 'L_pub:\n  ' + flag_off() + '\n  s_waitcnt vmcnt(0)\n  s_barrier\n  s_cmp_lg_u32 s30, 6\n  s_cbranch_scc1 L_end\n  ' + nonce_check('b') + '\n  ' + PUB + '\n  s_endpgm\n' + ''.join(SLOW) + 'L_end:\n  s_endpgm\n'
    s += f'''.section .rodata,"a"
.p2align 6
.amdhsa_kernel {KN}
  .amdhsa_next_free_vgpr 256
  .amdhsa_next_free_sgpr 102
  .amdhsa_accum_offset 176
  .amdhsa_group_segment_fixed_size 0
  .amdhsa_kernarg_size 80
  .amdhsa_user_sgpr_count 2
  .amdhsa_user_sgpr_kernarg_segment_ptr 1
  .amdhsa_system_sgpr_workgroup_id_x 1
.end_amdhsa_kernel
'''
    return s

if __name__ == '__main__':
    cfg = dict(CFG)
    out = 'cdna_kernels/' + NAME + '.s'
    for a in sys.argv[1:]:
        if a.startswith('out='): out = a[4:]; continue
        k, v = a.split('=', 1)
        cfg[k] = eval(v)
    open(out, 'w').write(build(cfg))
```

```python
import sys, struct
sys.path.insert(0, 'gen')
from sched import *

NAME = 'recurrent_scan__sliding_local_dilated__glu_gated_bilinear__prompt'
CH = 33792
AH_BYTES = 288 * CH
FLG = AH_BYTES
STO = AH_BYTES + 256 * 128
WS_BYTES = STO + 2048 * 16
CSL, CVL, PFL, LA, RA = 1536, 2560, 3072, 3584, 26112
CFG = dict(m3=1, stag=4, pq=2, s2_npre=4, lazy=1, ne=10, att_loop=6, att_sp=0.7, pfx=0, ofl='nt', phi=0, lk0=4, first=2, first_a=3, lk1=2, lims=[(5,3),(4,3),(5,3),(5,4),(5,4)], KT=12, stamp=False, st_flags='sc1', pf2=0, k2_rot=2, pfC=3, pfsw=[(0,2,4),(2,4,7)])
def f32(x): return '0x%08x' % struct.unpack('<I', struct.pack('<f', x))[0]
def mf(p, d, a, b, c, **kw): return I(p, f'v_mfma_f32_16x16x32_bf16 {d}, {a}, {b}, {c}', **kw)
ROWSEQ = [0, 0, 1, 2, 3, 4, 0, 5, 6, 7, 8, 1, 2, 3, 4, 0, 5, 6, 7]
def rowaddr(r): return LA if r == 8 else RA + 16384 * r
BLOCKS = [('a', 48), ('a', 64), ('a', 0), ('a', 16), ('a', 32)] + [('v', 64 + 16 * i) for i in range(5)]
def fr(n, o, c): b = BLOCKS[n % 10]; return vr(b[1] + o, c, b[0])

def bdma(p, n, rd=(), **kw):
    for h in range(2):
        v = 12 if h == 0 else 9
        I(p, f'v_add_u32 v12, s72, v11' if h == 0 else 'v_add_u32 v9, 7168, v12')
        I(p, f's_add_u32 m0, s76, {rowaddr(ROWSEQ[n]) + 1024*h}')
        kk = dict(kw)
        if 'early' in kk: kk['early'] += 2 * h; kk['dead'] += 2 * h
        I(p, f'buffer_load_dwordx4 v{v}, s[68:71], 0 offen lds', rd=list(rd), wr=[('tok_bd', n), ('tok_vq', 0)], **kk)
    G(p, 's_add_u32 s72, s72, s75\ns_cmp_eq_u32 s72, s73\ns_cselect_b32 s72, s74, s72')
def GS(p, text):
    lines = [l.strip() for l in text.split('\n') if l.strip()]
    i = 0
    while i < len(lines):
        if lines[i].startswith(('s_cmp', 's_bitcmp')):
            j = i + 1
            while j < len(lines) and lines[j].startswith(('s_cselect', 's_mov_b32')) and any(l.startswith('s_cselect') for l in lines[j:j+2]) and j - i < 4: j += 1
            G(p, '\n'.join(lines[i:j]))
            if j < len(lines) and (lines[j].startswith('s_cselect') or (lines[j].startswith('s_mov_b32') and j + 1 < len(lines) and lines[j+1].startswith('s_cselect'))):
                lines.insert(j, lines[i])
            i = j
        else:
            I(p, lines[i]); i += 1
def tr_setup(p, V, base, T):
    I(p, f"""v_lshrrev_b32 v{T}, 2, v1
            v_lshlrev_b32 v{T}, 7, v{T}
            v_and_b32 v{T+1}, 3, v1
            v_lshl_add_u32 v{T}, v{T+1}, 3, v{T}
            v_bfe_u32 v{T+1}, v1, 3, 2
            v_xor_b32 v{T+1}, s32, v{T+1}
            v_lshl_add_u32 v{T}, v{T+1}, 5, v{T}
            s_lshl_b32 s47, s32, 12
            s_add_u32 s47, s47, {base}
            v_add_u32 v{V}, s47, v{T}
            v_xor_b32 v{V+1}, 32, v{V}
            v_xor_b32 v{V+2}, 64, v{V}
            v_xor_b32 v{V+3}, 96, v{V}""")

class S1:
    def __init__(self, att, grp, cfg):
        self.att, self.grp, self.cfg = att, grp, cfg
        self.p = Prog(vm_lat=cfg.get('vm_lat', 900), gap=32, ds_lat=cfg.get('dsl_a' if att else 'dsl_f', 110))
        if att:
            self.NT, self.NI, self.pitch, self.NM = 7, 11, 2688, 3
            XA, XB, XC = RA, RA + 16384, RA + 71680
            w0 = RA + 30720
            self.WS = [w0 + 8192 * i for i in range(5)] + [RA + 86016 + 8192 * i for i in range(6)]
            self.wph = 2
        else:
            self.NT, self.NI, self.pitch, self.NM = 11, 8, 3584, 2
            XA, XB, XC = RA, RA + 22528, RA + 94208
            self.WS = [RA + 45056 + 8192 * i for i in range(6)] + [RA + 116736, RA + 124928]
            self.wph = 4
        assert self.WS[-1] + 8192 <= 163840
        self.XS = [XB, XC, XA, LA, XB, XC, LA]
        self.XPREV = {4: 0, 5: 1, 6: 3}
        if att and cfg.get('x_xp'): self.XPREV[6] = 2
        self.WB = self.WS[0]
        self.ONES = self.NT * 16 - 1
        self.NU = (self.NT + 3) // 4
        self.dmaq, self.have, self.wmap, self.pending_free = [], set(), {}, []
        self.xring = 0; self.nimg = 0; self.lastbar = 0
        self.t0 = (0 if att else 6) * grp
        self.rot = cfg.get('phi', 0) if not att else cfg.get('phia', 0)
    V_OFFX, V_XB, V_PF, V_TR, V_XH = 10, 13, 15, 17, 21
    V_TABW, V_TABR, V_OFFW, V_CSA = 30, 27, 32, 34
    def waddr(self, u): return self.WS[(u + self.wph) % self.NI]
    def head(self):
        p, att = self.p, self.att
        if self.cfg.get('pfi', 1):
            nm = 'att' if att else 'ffn'; KN = NAME + '_kernel'; NL = self.cfg.get('pfin', 8)
            p.add(f"""s_getpc_b64 s[48:49]
L_pc{nm}:
  s_sub_u32 s48, s48, L_pc{nm}-{KN}
  s_subb_u32 s49, s49, 0
  s_mov_b32 s50, L_{nm}0-{KN}
  s_cmp_ge_u32 s30, 4
  s_cselect_b32 s50, L_{nm}1-{KN}, s50
  s_lshl_b32 s51, s57, 3
  s_add_u32 s51, s51, s30
  s_lshl_b32 s51, s51, 8
  v_and_b32 v1, 63, v0
  v_and_b32 v4, 1, v1
  v_lshl_add_u32 v4, v4, 7, s51
  v_lshl_add_u32 v5, v1, 7, s50
  v_cmp_gt_u32 vcc, {NL}, v1
  s_nop 1
  v_cndmask_b32 v4, v4, v5, vcc
  v_min_u32 v4, L_end-{KN}, v4
  v_mov_b32 v5, s49
  v_add_co_u32 v4, vcc, s48, v4
  s_nop 1
  v_addc_co_u32 v5, vcc, 0, v5, vcc
  global_load_dword v35, v[4:5], off""", 'vml', [], [], lat=4)
        p.add('s_load_dwordx2 s[60:61], s[0:1], 64', 'salu', [], [])
        p.add('s_load_dwordx2 s[72:73], s[0:1], 56', 'salu', [], [])
        I(p, 'v_and_b32 v1, 63, v0\ns_and_b32 s29, s30, 3\ns_and_b32 s31, s30, 1\ns_lshr_b32 s32, s30, 1')
        I(p, 'v_lshrrev_b32 v3, 4, v1\nv_and_b32 v2, 15, v1')
        I(p, 's_mov_b32 s14, 1835008\ns_mov_b32 s15, 0x20000\ns_mov_b32 s19, 0x20000')
        I(p, f's_mov_b32 s18, {1204224 if att else 1605632}')
        if not att: I(p, 's_mov_b32 s22, 1605632\ns_mov_b32 s23, 0x20000')
        I(p, f"""s_lshl_b32 s47, s32, 2
                 s_and_b32 s47, s47, 4
                 v_or_b32 v4, s47, v3
                 v_lshlrev_b32 v5, 1, v4
                 v_xor_b32 v5, v5, v2
                 s_mul_i32 s52, s30, {4*self.pitch}
                 s_add_u32 s52, s52, s43
                 v_mul_u32_u24 v6, {self.pitch}, v3
                 v_lshl_add_u32 v6, v5, 4, v6
                 v_add_u32 v{self.V_OFFW}, s52, v6""")
        if not att and self.cfg.get('mix', 0):
            I(p, f'v_and_b32 v6, 8, v5\nv_lshl_add_u32 v{self.V_OFFW}, v6, 4, v{self.V_OFFW}')
        if att:
            I(p, f'v_cmp_le_u32 vcc, 14, v5\nv_mov_b32 v6, 0x40000000\nv_cndmask_b32 v{self.V_OFFW}, v{self.V_OFFW}, v6, vcc')
        I(p, f"""v_add_u32 v{self.V_OFFW+1}, {32*self.pitch}, v{self.V_OFFW}
                 s_lshl_b32 s41, s30, 10
                 s_lshl_b32 s53, s31, 2
                 v_or_b32 v4, s53, v3
                 v_and_b32 v5, 7, v1
                 v_xor_b32 v4, v4, v5
                 v_lshrrev_b32 v5, 3, v1
                 v_mul_u32_u24 v5, 896, v5
                 v_lshl_add_u32 v{self.V_OFFX}, v4, 4, v5
                 s_lshl_b32 s39, s30, 3
                 s_add_u32 s39, s39, s33
                 s_mul_i32 s39, s39, 896""")
        if self.rot == -1:
            I(p, f's_mul_i32 s28, s57, {self.cfg.get("rmul", 1)}\ns_mul_i32 s47, s28, 9363\ns_lshr_b32 s47, s47, 16\ns_mul_i32 s47, s47, 7\ns_sub_u32 s28, s28, s47')
        elif self.rot == -2:
            I(p, 's_and_b32 s28, s57, 1\ns_lshl_b32 s28, s28, 2')
        elif self.rot == -3:
            I(p, 's_mul_i32 s47, s57, 37\ns_lshr_b32 s47, s47, 8\ns_add_u32 s28, s57, s47\ns_mul_i32 s47, s28, 43\ns_lshr_b32 s47, s47, 7\ns_mul_i32 s47, s47, 3\ns_sub_u32 s28, s28, s47\ns_lshl_b32 s28, s28, 1')
        elif self.rot:
            I(p, f's_lshl_b32 s28, s56, 2\ns_lshr_b32 s28, {self.rot}, s28\ns_and_b32 s28, s28, 7')
        for n in range(self.NU):
            if n == 0 and att: I(p, 's_max_i32 s34, s39, 0')
            else: I(p, f's_add_u32 s{34+n}, s39, {n*64*896}')
        if self.rot:
            I(p, 's_lshl_b32 s100, s28, 7')
            for n in range(self.NU): I(p, f's_add_u32 s{34+n}, s{34+n}, s100')
        G(p, """s_cmp_eq_u32 s30, 5
                s_cselect_b32 s45, 0x00ffffff, -1
                s_cmp_ge_u32 s30, 6
                s_cselect_b32 s45, 0, s45
                s_cselect_b32 s44, 0, -1""")
        p.add('s_waitcnt lgkmcnt(0)', 'salu', [], R('s', 12, 2) + R('s', 16, 2) + R('s', 20, 2) + R('s', 24, 2) + R('s', 4, 2) + R('s', 8, 2) + R('s', 60, 2) + R('s', 68, 2) + R('s', 72, 2))
        for j in range(7):
            for m in range(self.NM): self.q_w(2 * j, m)
            for n in range(self.NU): self.dmaq.append(('x', j, n))
            for m in range(self.NM): self.q_w(2 * j + 1, m)
        pf0 = self.cfg.get('pf0')
        def early_pf():
            a, b = pf0[1], pf0[2]
            I(p, 's_lshl_b32 s59, s2, 3\ns_add_u32 s59, s59, s30')
            self.lin(self.V_PF, 's[16:19]', a * 229376, (b - a) * 229376, 1344, 59)
            self.touch(self.V_PF, 's[20:23]')
        if pf0 and not att and pf0[0] == 0: early_pf()
        self.pump(limit=5, at=-999)
        if pf0 and not att and pf0[0] == 1: early_pf()
        if self.cfg.get('ob', 1): p.add('s_barrier', 'bar', [], [('tok_bar', 0), ('tok_ep', 0)])
        p.add(';SPLIT', 'salu', [], [])
        p.fixed = len(p.ops)
        if self.cfg.get('lazy', 1): p.default_early = 0
    def setup_b(self, V_ST):
        p, att = self.p, self.att
        self.V_ST = V_ST
        I(p, f's_mov_b32 s27, 0x20000\ns_mov_b32 s26, {WS_BYTES}')
        I(p, f"""v_lshrrev_b32 v4, 1, v2
                 v_xor_b32 v4, v4, v3
                 v_lshlrev_b32 v5, 7, v2
                 v_add_u32 v5, {self.t0*2048}, v5
                 v_lshl_add_u32 v{self.V_XB}, v4, 4, v5
                 v_xor_b32 v{self.V_XB+1}, 64, v{self.V_XB}
                 v_add_u32 v{self.V_XH}, 65536, v{self.V_XB}
                 v_add_u32 v{self.V_XH+1}, 65536, v{self.V_XB+1}""")
        I(p, f"""v_bfe_u32 v4, v1, 2, 2
                 v_lshl_add_u32 v5, v3, 3, v4
                 v_lshlrev_b32 v5, 8, v5
                 v_add_u32 v5, {self.WB}, v5
                 v_and_b32 v6, 1, v3
                 v_lshl_add_u32 v4, v6, 2, v4
                 v_lshlrev_b32 v4, 5, v4
                 v_and_b32 v6, 3, v1
                 s_mul_i32 s52, s29, {56 if att else 64}
                 v_lshl_add_u32 v7, v6, 3, s52
                 v_xor_b32 v8, v7, v4
                 v_add_u32 v{self.V_TR}, v8, v5
                 v_add_u32 v7, 32, v7""")
        if att: I(p, 'v_cmp_eq_u32 vcc, 3, v6\nv_mov_b32 v8, 224\nv_cndmask_b32 v7, v7, v8, vcc')
        I(p, f'v_xor_b32 v8, v7, v4\nv_add_u32 v{self.V_TR+1}, v8, v5')
        I(p, f'v_add_u32 v{self.V_TR+2}, 49152, v{self.V_TR}\nv_add_u32 v{self.V_TR+3}, 49152, v{self.V_TR+1}')
        if self.grp == 1:
            I(p, f"""v_and_b32 v4, 7, v1
                     v_lshlrev_b32 v4, 4, v4
                     v_add_u32 v4, {(self.NT-1)*2048 + 15*128}, v4
                     v_add_u32 v5, 65536, v4
                     v_mov_b32 v6, 0x3f803f80
                     v_mov_b32 v7, 0x3f803f80
                     v_mov_b32 v8, 0x3f803f80
                     v_mov_b32 v9, 0x3f803f80""")
            for xa in self.XS[:4]:
                I(p, f'ds_write_b128 v{4 + xa // 65536}, v[6:9] offset:{xa % 65536}', wr=[('tok_ones', 0)])
        I(p, f'v_mul_u32_u24 v4, {CH}, v3\nv_lshl_add_u32 v{V_ST}, v2, 4, v4')
        if not att and self.cfg.get('mix', 0):
            I(p, f's_and_b32 s52, s29, 2\ns_add_u32 s52, s52, s29\ns_mul_i32 s52, s52, {4*CH}\ns_add_u32 s46, s46, s52')
        else:
            I(p, f's_mul_i32 s52, s29, {4*CH}\ns_add_u32 s46, s46, s52')
        I(p, f'v_lshlrev_b32 v{self.V_TABR}, {2 if att else 3}, v2')
        I(p, f's_lshl_b32 s52, s29, 8\ns_add_u32 s52, s52, {CSL}\nv_lshl_add_u32 v{self.V_CSA}, v3, 6, s52')
        I(p, 's_mov_b32 s62, 0x80008000\ns_mov_b32 s63, 0x80008000')
    def setup_s2(self):
        p = self.p
        ng = self.cfg.get('k2_rot', 7)
        def tab(N): return sum(((c % ng) * N // ng) << (4 * c) for c in range(7))
        cnt = self.cfg.get('host', [29] * 7 + [28]); assert sum(cnt) == 231
        cum = [sum(cnt[:i]) for i in range(8)]
        pk = lambda v: sum(x << (8 * i) for i, x in enumerate(v))
        GS(p, f"""s_mov_b32 s66, {pk(cum[:4])}
                 s_mov_b32 s67, {pk(cnt[:4])}
                 s_cmp_ge_u32 s56, 4
                 s_cselect_b32 s66, {pk(cum[4:])}, s66
                 s_cselect_b32 s67, {pk(cnt[4:])}, s67
                 s_lshl_b32 s47, s56, 3
                 s_lshr_b32 s66, s66, s47
                 s_lshr_b32 s67, s67, s47
                 s_and_b32 s47, s66, 255
                 s_and_b32 s77, s67, 255
                 s_add_u32 s47, s47, s57
                 s_mul_i32 s66, s47, 9363
                 s_lshr_b32 s66, s66, 16
                 s_mul_i32 s67, s66, 7
                 s_sub_u32 s67, s47, s67
                 s_cmp_ge_u32 s30, 6
                 s_cselect_b32 s68, s4, s8
                 s_cselect_b32 s69, s5, s9
                 s_cselect_b32 s70, s6, s10
                 s_cselect_b32 s75, 28, 32
                 s_cselect_b32 s73, 16, 19
                 s_cselect_b32 s74, 0, s32
                 s_mov_b32 s42, {tab(18)}
                 s_cselect_b32 s42, {tab(16)}, s42
                 s_cmp_ge_u32 s57, s77
                 s_cselect_b32 s70, 0, s70
                 s_mov_b32 s71, 0x20000
                 s_mul_i32 s75, s75, 896
                 s_mul_i32 s74, s74, {19*28672}
                 s_mul_i32 s73, s73, s75
                 s_add_u32 s73, s73, s74
                 s_lshl_b32 s72, s67, 2
                 s_lshr_b32 s42, s42, s72
                 s_and_b32 s42, s42, 15
                 s_mul_i32 s72, s42, s75
                 s_add_u32 s72, s72, s74
                 s_lshl_b32 s76, s30, 11""")
        I(p, """v_lshlrev_b32 v4, 1, v3
                v_and_b32 v5, 7, v1
                v_xor_b32 v4, v4, v5
                v_lshrrev_b32 v5, 3, v1
                v_mul_u32_u24 v6, 896, v5
                v_lshl_add_u32 v6, v4, 4, v6
                s_mul_i32 s47, s31, 14336
                s_lshl_b32 s52, s67, 7
                s_add_u32 s47, s47, s52
                v_add_u32 v11, s47, v6""")
        tr_setup(p, 4, RA, 6)
    def nonce(self, V):
        self.p.add(f'v_mov_b32 v{V}, 0', 'valu', [], [('v', V)])
        self.p.add(f'global_load_dwordx2 {vr(V,2)}, v{V}, s[60:61] sc1', 'vml', [('v', V), ('tok_ep', 0)] + R('s', 60, 2), R('v', V, 2), early=self.lastbar, dead=self.lastbar + 2)
    def st_load(self):
        p = self.p
        if self.att: return
        I(p, """s_lshl_b32 s37, s2, 3
                s_add_u32 s37, s37, s30
                s_mul_i32 s58, s37, 1792
                v_and_b32 v56, 31, v1
                v_cmp_gt_u32 vcc, 28, v56
                v_lshrrev_b32 v57, 5, v1
                v_mul_u32_u24 v57, 896, v57
                v_lshl_add_u32 v56, v56, 4, v57
                v_add_u32 v56, s58, v56
                v_cndmask_b32 v56, -512, v56, vcc""".replace('-512', 'v60'), dead=-930) if I(p, 'v_mov_b32 v60, 0x40000000', dead=-931) else None
        I(p, 'buffer_load_dwordx4 v[48:51], v56, s[12:15], 0 offen', rd=[('tok_ep', 0), ('m0', 0)], dead=-929)
        I(p, 'buffer_load_dwordx4 v[52:55], v56, s[12:15], 0 offen offset:448', rd=[('tok_ep', 0), ('m0', 0)], dead=-928)
    def st_compute(self):
        p = self.p; at = self.lastbar
        if self.att: return
        dots = 'v_mov_b32 v56, 0\n  v_mov_b32 v57, 0\n  s_mov_b32 s58, 0x3f803f80\n  ' + '\n  '.join(
            [f'v_dot2c_f32_bf16 v56, s58, v{48+i}\n  v_dot2c_f32_bf16 v57, v{48+i}, v{48+i}' for i in range(8)]) + '\n  s_nop 2'
        if self.cfg.get('st_c', 2) < 0:
            p.add(dots, 'pk', R('v', 48, 8) + [('tok_ep', 0)], R('v', 56, 2) + [('s', 58)], dead=-100)
        else:
            b = p.ops[self.ep0]; assert b.kind == 'bar'
            dots = dots.replace('s58', 's65')
            b.glue = ([], [Op(dots, 'pk', R('v', 48, 8), R('v', 56, 2) + [('s', 65)])])
            b.rd += R('v', 48, 8); b.wr += R('v', 56, 2) + [('s', 65)]
        I(p, f"""v_permlane16_swap_b32 v56, v57
                 v_add_f32 v52, v56, v57
                 v_add_f32_dpp v52, v52, v52 row_ror:8 row_mask:0xf bank_mask:0xf
                 v_add_f32_dpp v52, v52, v52 row_ror:4 row_mask:0xf bank_mask:0xf
                 v_add_f32_dpp v52, v52, v52 row_ror:2 row_mask:0xf bank_mask:0xf
                 v_add_f32_dpp v52, v52, v52 row_ror:1 row_mask:0xf bank_mask:0xf
                 v_mov_b32 v53, v52
                 v_permlane16_swap_b32 v52, v53
                 v_mul_f32 v52, {f32(1/448)}, v52
                 v_mul_f32 v54, v52, v52
                 v_mul_f32 v53, {f32(1/448)}, v53
                 v_sub_f32 v53, v53, v54
                 v_max_f32 v53, 0, v53
                 v_cvt_pk_bf16_f32 v54, -v52, v53
                 v_lshlrev_b32 v48, 16, v54
                 v_and_b32 v53, 0xffff0000, v54
                 v_add_f32 v53, {f32(1e-5)}, v53
                 v_cvt_pk_bf16_f32 v53, v53, v53
                 v_and_b32 v53, 0xffff0000, v53
                 v_sqrt_f32 v53, v53
                 v_cvt_pk_bf16_f32 v53, v53, v53
                 v_and_b32 v53, 0xffff0000, v53
                 v_rcp_f32 v50, v53
                 s_lshl_b32 s37, s37, 5
                 s_add_u32 s37, s37, {STO}
                 v_lshrrev_b32 v55, 1, v1
                 v_add_u32 v55, s37, v55
                 v_and_b32 v56, 31, v1
                 v_cmp_eq_u32 vcc, 0, v56
                 v_cndmask_b32 v55, -16, v55, vcc""")
    def st_publish(self):
        p = self.p; at = self.lastbar; tag = f's{int(self.att)}{self.grp}'
        p.add(nonce_check(tag, 58, 54), 'rfl', R('v', 58, 2) + R('s', 60, 2), R('v', 58, 2) + [('v', 54), ('vcc', 0), ('s', 65)], early=at + 1, dead=at + 2)
        if self.att: return
        I(p, 'v_mov_b32 v49, v58\nv_mov_b32 v51, v59')
        I(p, 'buffer_store_dwordx4 v[48:51], v55, s[24:27], 0 offen sc1', rd=[('tok_ep', 0), ('m0', 0)], early=at + 2, dead=at + 3)
    def st_fetch(self):
        p = self.p; at = self.lastbar
        I(p, f"""s_lshl_b32 s58, s29, 6
                 v_add_u32 v52, s58, v1
                 v_min_u32 v52, {126 if self.att else 190}, v52
                 v_lshlrev_b32 v{self.V_TABW}, {2 if self.att else 3}, v52
                 v_add_u32 v52, s33, v52
                 v_max_i32 v52, 0, v52
                 v_min_u32 v52, 2047, v52
                 v_lshlrev_b32 v52, 4, v52
                 v_add_u32 v52, {STO}, v52""")
        I(p, 'buffer_load_dwordx4 v[48:51], v52, s[24:27], 0 offen sc1', rd=[('tok_ep', 0), ('m0', 0)], early=at + 1, dead=at + 2)
    def st_table(self, VN):
        p = self.p; at = self.lastbar; tag = f't{int(self.att)}'
        SLOW.append(f"""L_q{tag}:
  s_mov_b32 s65, 0
L_qo{tag}:
  s_sleep 4
  buffer_load_dwordx4 v[48:51], v52, s[24:27], 0 offen sc1
  s_add_u32 s65, s65, 1
  s_waitcnt vmcnt(0)
  v_cmp_ne_u32 vcc, v49, v58
  v_cmp_ne_u32 s[48:49], v51, v59
  s_cmp_ge_u32 s65, 0x40000
  s_cbranch_scc1 L_r{tag}
  s_nop 1
  s_or_b64 vcc, vcc, s[48:49]
  s_cbranch_scc1 L_qo{tag}
  s_branch L_r{tag}
""")
        p.add(f"""v_cmp_ne_u32 vcc, v49, v58
  v_cmp_ne_u32 s[48:49], v51, v59
  s_nop 2
  s_or_b64 vcc, vcc, s[48:49]
  s_cbranch_scc1 L_q{tag}
L_r{tag}:""", 'rfl', R('v', 48, 5) + R('v', 58, 2), R('v', 48, 4) + [('vcc', 0), ('s', 65), ('s', 48), ('s', 49)], early=at + 1, dead=at + 2)
        if self.att:
            I(p, f'ds_write_b32 v{self.V_TABW}, v48', wr=[('tok_tw', 0)], dead=at + 4)
            I(p, f'ds_write_b32 v{self.V_TABW}, v50 offset:1024', wr=[('tok_tw', 0)], dead=at + 5)
        else:
            I(p, 'v_mul_f32 v49, v50, v50')
            I(p, f'ds_write_b64 v{self.V_TABW}, v[48:49]', wr=[('tok_tw', 0)], dead=at + 4)
        I(p, f'v_mov_b32 v{VN}, v58\nv_mov_b32 v{VN+1}, v59')
    def st_hooks(self, ks, VN):
        c = self.cfg
        if ks == c.get('st_c', 2): self.st_compute()
        if self.att and not self.grp: return
        if ks == (c.get('st_f', 9) if self.att else c.get('st_n', 3)): self.nonce(58)
        if ks == (c.get('st_t', 11) if self.att else c.get('st_p', 5)): self.st_publish()
        if self.grp:
            if ks == c.get('st_f', 9): self.st_fetch()
            if ks == c.get('st_t', 11): self.st_table(VN)
    def early_b(self, n, at):
        bdma(self.p, n, rd=[('tok_ep', 0)], early=at, dead=at + 1)
    def early_read(self, n):
        for ct in range(4):
            for e in range(2):
                I(self.p, f'ds_read_b64_tr_b16 {fr(n, 4*ct+2*e, 2)}, v{4+ct} offset:{e*2048}', rd=[('tok_ep', 0)], wr=[('tok_er', n)])
        self.pending_free.append((('tok_er', n), ('tok_ef', n)))
    def eb_hooks(self, ks, plan):
        if ks in (9, 12): self.early_read(0 if ks == 9 else 1)
        for q, n in enumerate({7: [0], 10: [1]}.get(ks, []) + plan.get(ks, [])):
            self.early_b(n, self.lastbar + 2 + 5 * q)
        if ks in (8, 11): self.pending_free.append((('tok_bd', 0 if ks == 8 else 1), ('tok_el', ks)))
    def pf_code(self):
        if self.cfg.get('p1', -1) == self.grp: self.p.add('s_setprio 1', 'salu', [], [], dead=-999)
        return
    def pf_tlb(self):
        if not self.cfg.get('tlb', 0): return
        p, V = self.p, self.V_PF
        I(p, f"""s_mov_b32 s27, 0x20000
                 s_mov_b32 s26, {WS_BYTES}
                 s_lshl_b32 s58, s57, 3
                 s_add_u32 s58, s58, s30
                 s_mul_i32 s59, s58, {(WS_BYTES // 255) & ~127}
                 s_min_u32 s59, s59, {WS_BYTES - 128}
                 v_mov_b32 v{V}, s59
                 s_mul_i32 s59, s58, 7168
                 v_mov_b32 v{V+1}, s59""")
        self.touch(V, 's[24:27]', dead=-940)
        p.add(f'global_load_dword v35, v{V+1}, s[72:73]', 'vml', [('v', V + 1), ('tok_ep', 0), ('m0', 0)] + R('s', 72, 2), [], dead=-939)
    def pf_setup(self):
        I(self.p, 's_mov_b32 s10, 1605632\ns_mov_b32 s11, 0x20000\ns_mov_b32 s6, 401408\ns_mov_b32 s7, 0x20000')
        if not self.att:
            I(self.p, 's_lshl_b32 s59, s2, 2\ns_add_u32 s59, s59, s29\ns_mov_b32 s98, 1204224\ns_mov_b32 s99, 0x20000' .replace('s98', 's70').replace('s99', 's71'))
    def lin(self, V, srd, base, nbytes, nw, idx, **kw):
        ST = self.cfg.get('pfst', 128); sh = ST.bit_length() - 1
        c = -(-nbytes // (ST * nw))
        assert c <= 64
        I(self.p, f's_mul_i32 s58, s{idx}, {c*ST}\ns_add_u32 s58, s58, {base}\nv_min_u32 v{V}, {c-1}, v1\nv_lshl_add_u32 v{V}, v{V}, {sh}, s58')
        self.touch(V, srd, **kw)
    def pf_phase(self, a, b, **kw):
        p, V, n = self.p, self.V_PF, b - a
        if self.att or not self.cfg.get('pf1', 1): return
        if self.cfg.get('pfw', 0): self.lin(V, 's[20:23]' if self.grp else 's[16:19]', a * 229376, n * 229376, 672, 59, **kw)
        if self.grp == 0: self.lin(V + 1, 's[68:71]', a * 172032, n * 172032, 672, 59, **kw)
        elif self.cfg.get('pfx', 1) == 0: pass
        elif self.cfg.get('xlin', 0):
            if not getattr(self, 'xdone', False): self.lin(V + 1, 's[12:15]', 0, 1835008, 672, 59, **kw); self.xdone = True
        else:
            I(p, f"""s_mul_i32 s58, s59, {4*896}
                     s_add_u32 s58, s58, {a*128}
                     v_min_u32 v{V+1}, {n-1}, v2
                     v_lshlrev_b32 v{V+1}, 7, v{V+1}
                     v_mad_u32_u24 v{V+1}, v3, s3, v{V+1}
                     v_add_u32 v{V+1}, s58, v{V+1}""")
            self.touch(V + 1, 's[12:15]', **kw)
    def pf_w2(self, **kw):
        V = self.V_PF
        if not self.cfg.get('pf1', 1): return
        if self.att != bool(self.cfg.get('pfCatt', 0)): return
        nw = 352 if self.att else 672
        if self.att: I(self.p, 's_sub_u32 s59, s2, 168\ns_lshl_b32 s59, s59, 2\ns_add_u32 s59, s59, s29')
        self.lin(V, 's[8:11]', 802816 * self.grp, 802816, nw, 59, **kw)
        if self.grp == 0: self.lin(V + 1, 's[4:7]', 0, 401408, nw, 59, **kw)
    def touch(self, V, srd, off=0, cls=None, **kw):
        if cls is not None:
            q, n = cls
            k, r, w, c = auto(f'buffer_load_dword v35, v{V}, {srd}, 0 offen')
            S1.nlab += 1
            self.p.add(f"""s_and_b32 s50, s57, {n-1}
  s_cmp_eq_u32 s50, {q}
  s_cbranch_scc0 L_sk{S1.nlab}
  buffer_load_dword v35, v{V}, {srd}, 0 offen offset:{off}
L_sk{S1.nlab}:""", 'vml', r + [('tok_ep', 0), ('m0', 0)], [('s', 50)], maybe=True, lat=4, **kw)
            return
        k, r, w, c = auto(f'buffer_load_dword v35, v{V}, {srd}, 0 offen')
        self.p.add(f'buffer_load_dword v35, v{V}, {srd}, 0 offen offset:{off}', 'vml', r + [('tok_ep', 0), ('m0', 0)], [], **kw)
    def prefetch_k2(self, piece):
        p, V = self.p, self.V_PF
        if not self.cfg.get('pf2', 1) or self.att: return
        if piece == 0:
            I(p, f"""s_lshl_b32 s59, s57, 3
                     s_add_u32 s59, s59, s30
                     s_mul_i32 s58, s59, {75*128}
                     s_mul_i32 s59, s59, {19*128}
                     v_min_u32 v{V}, 14, v1
                     v_lshl_add_u32 v{V}, v{V}, 7, s58
                     v_min_u32 v{V+1}, 18, v1
                     v_lshl_add_u32 v{V+1}, v{V+1}, 7, s59""")
        kw = dict(early=self.lastbar + 2, dead=self.lastbar + 4)
        if piece in (2, 4): I(p, f'v_add_u32 v{V}, 3840, v{V}')
        if piece < 5: self.touch(V, 's[8:11]', 1920 * (piece % 2), **kw)
        else: self.touch(V + 1, 's[4:7]', **kw)
    def q_w(self, ks, m):
        self.wmap[(ks, m)] = self.nimg
        self.dmaq.append(('w', ks, m, self.nimg)); self.nimg += 1
    def pump(self, limit=99, at=None, sp=4):
        p = self.p; k = 0
        if at is None: at = max(self.lastbar, 0) + 1 + (sp / 2.0) * self.grp
        while self.dmaq and k < limit:
            def free(d):
                if d[0] == 'x': return d[1] not in self.XPREV or ('tok_xfree', self.XPREV[d[1]]) in self.have
                return d[3] < self.NI or ('tok_wfree', d[3] - self.NI) in self.have
            if not free(self.dmaq[0]) and not self.rot and self.cfg.get('byp', 1):
                o = next((i for i, e in enumerate(self.dmaq) if e[0] != self.dmaq[0][0]), None)
                if o is not None and free(self.dmaq[o]): self.dmaq.insert(0, self.dmaq.pop(o))
            d = self.dmaq[0]
            kw = dict(early=at + sp * k, dead=at + sp * k + 1)
            if d[0] == 'x':
                _, j, n = d
                rd = []
                if j in self.XPREV:
                    tok = ('tok_xfree', self.XPREV[j])
                    if tok not in self.have: return
                    rd = [tok]
                I(p, f's_add_u32 m0, s41, {self.XS[j] + 8192*n - (0 if self.rot else 128*j)}')
                if n == self.NU - 1 and (self.grp == 1 or j == 0):
                    kw.update(pre=[mk('s_mov_b64 exec, s[44:45]')], post=[mk('s_mov_b64 exec, -1')], maybe=True)
                    rd = rd + R('s', 44, 2)
                I(p, f'buffer_load_dwordx4 v{self.V_OFFX}, s[12:15], s{34+n} offen offset:{0 if self.rot else 128*j} lds', rd=rd + [('tok_ep', 0)], wr=[('tok_xd', j, n)], **kw)
            else:
                _, ks, m, u = d
                rd = []
                if u >= self.NI:
                    tok = ('tok_wfree', u - self.NI)
                    if tok not in self.have: return
                    rd = [tok]
                off = 896 * m if self.att else 0
                srd = 's[16:19]' if (self.att or m == 0) else 's[20:23]'
                if ks % 2 == 0 and m == 0:
                    if not self.rot: I(p, f's_mov_b32 s64, {(ks//2)*64*self.pitch}')
                    elif ks == 0:
                        I(p, f's_mul_i32 s64, s28, {64*self.pitch}')
                    else:
                        G(p, f's_add_u32 s28, s28, 1\ns_cmp_eq_u32 s28, 7\ns_cselect_b32 s28, 0, s28\ns_mov_b32 s100, 128\ns_cselect_b32 s100, -768, s100\ns_mul_i32 s64, s28, {64*self.pitch}')
                        for n in range(self.NU): I(p, f's_add_u32 s{34+n}, s{34+n}, s100')
                I(p, f's_add_u32 m0, s41, {self.waddr(u) - off}')
                I(p, f'buffer_load_dwordx4 v{self.V_OFFW + (ks&1)}, {srd}, s64 offen offset:{off} lds', rd=rd + [('tok_ep', 0)], wr=[('tok_wd', u)], **kw)
            self.dmaq.pop(0); k += 1
    def barrier(self, xs=(), ws=(), rd=(), wr=(), look=8):
        rd, wr = list(rd), [('tok_bar', 0), ('tok_ep', 0)] + list(wr)
        for j in xs:
            rd += [('tok_xd', j, n) for n in range(self.NU)]; wr.append(('tok_xr', j))
        for (ks, m) in ws:
            u = self.wmap[(ks, m)]
            rd.append(('tok_wd', u)); wr.append(('tok_wr', u))
        for (a, b) in self.pending_free:
            rd.append(a); wr.append(b); self.have.add(b)
        self.pending_free = []
        self.retime(self.p.nm - look)
        self.lastbar = self.p.nm - look
        self.ep0 = len(self.p.ops)
        self.p.add('s_barrier', 'bar', rd, wr, early=self.p.nm - look, dead=self.p.nm - look + 2)
    ep0 = None
    nlab = 0
    def retime(self, nextbar):
        if self.ep0 is None or not self.cfg.get('retime', 1): return
        ops = [o for o in self.p.ops[self.ep0:] if o.kind in ('dma', 'vml', 'vms') and ('tok_ep', 0) in o.rd]
        if not ops: return
        lo = max(self.lastbar, 0); span = max(nextbar - lo - 1, 1)
        for i, o in enumerate(ops):
            o.early = lo + (i + (0.25 if self.grp == 0 else 0.75)) * span / len(ops)
            o.dead = o.early + 1
    def epoch(self, ks, look, xfree=None, plan=None):
        cfg = self.cfg
        if xfree is not None:
            for j in xfree: self.pending_free.append((('tok_xrd', j), ('tok_xfree', j)))
        self.barrier(xs=[ks // 2] if ks % 2 == 0 else [], ws=[(ks, m) for m in range(self.NM)],
                     rd=[('tok_ones', 0)] if (ks == 0 and self.grp) else [], look=look)
        if xfree is None and ks % 2 == 0 and 2 <= ks: self.pending_free.append((('tok_xrd', ks // 2 - 1), ('tok_xfree', ks // 2 - 1)))
        lb = max(self.lastbar, 0)
        self.eb_hooks(ks, plan)
        for (e, a, b) in cfg.get('pfs', [(-1, 1, 2), (0, 2, 4), (2, 4, 7)]):
            if e == ks: self.pf_phase(a, b, early=lb, dead=lb + 1)
        for (e, a, b) in cfg.get('pfsw', []):
            if e == ks and not self.att: self.lin(self.V_PF, 's[20:23]' if self.grp else 's[16:19]', a * 229376, (b - a) * 229376, 672, 59, early=lb, dead=lb + 1)
        nst = cfg.get('stag', 1)
        if nst == 1:
            if ks == cfg.get('pfC', 4): self.pf_w2(early=lb, dead=lb + 1)
        elif 0 <= ks - cfg.get('pfC', 4) < nst: self.pf_w2(early=lb, dead=lb + 1, cls=(ks - cfg.get('pfC', 4), nst))
        for (e, a, b, n) in cfg.get('pfsq', []):
            if 0 <= ks - e < n and not self.att:
                self.lin(self.V_PF, 's[20:23]' if self.grp else 's[16:19]', a * 229376, (b - a) * 229376, 672, 59, early=lb, dead=lb + 1, cls=(ks - e, n))
                if self.grp == 0: self.lin(self.V_PF + 1, 's[68:71]', a * 172032, (b - a) * 172032, 672, 59, early=lb, dead=lb + 1, cls=(ks - e, n))
        if ks == 6: self.setup_s2()
        if 0 <= ks - cfg.get('pf2_at', 4) < 6: self.prefetch_k2(ks - cfg.get('pf2_at', 4))
        lims = cfg.get('lims', [(5, 1), (9, 2), (7, 3)])
        lim, sp = lims[ks] if ks < len(lims) else (cfg.get('lim', 4), 3.5)
        self.pump(limit=lim, sp=sp * {(0, 0): 24, (0, 1): 20, (1, 0): 22, (1, 1): 18}[(int(self.att), self.grp)] / 24.0 * cfg.get('spk', 0.9))
    def wfrag(self, ks, m, base):
        u = self.wmap[(ks, m)]; off = self.waddr(u) - self.WB
        win = 1 if off >= 49152 else 0
        for s in range(2):
            for e in range(2):
                I(self.p, f'ds_read_b64_tr_b16 {ar(base+4*s+2*e,2)}, v{self.V_TR+2*win+s} offset:{off - 49152*win + e*1024}',
                  rd=[('tok_wr', u)], wr=[('tok_wrd', u)])
        self.pending_free.append((('tok_wrd', u), ('tok_wfree', u)))
    def xfrag(self, t, ks, stat=None):
        j, e = ks >> 1, ks & 1
        r = self.XR[self.xring % len(self.XR)]; self.xring += 1
        off = self.XS[j] + (t - self.t0) * 2048
        a = (self.V_XH if off >= 65536 else self.V_XB) + e; off %= 65536
        I(self.p, f'ds_read_b128 {r}, v{a} offset:{off}', rd=[('tok_xr', j)], wr=[('tok_xrd', j)])
        return r
    def masked(self, text, sreg, **kw):
        I(self.p, text, rd=R('s', sreg, 2) + list(kw.pop('rd', [])), pre=[mk(f's_mov_b64 exec, s[{sreg}:{sreg+1}]')], post=[mk('s_mov_b64 exec, -1')], **kw)

def gen_ffn(cfg, grp):
    k = S1(False, grp, cfg); p = k.p
    ACC, SACC, CS, TMP = 64, 36, 48, 164
    k.XR = [vr(r, 4) for r in ([36, 40, 44, 164, 168, 172] if grp == 0 else [144, 148, 152, 156, 168, 172])]
    STR = [160, 162, 24, 28, 30, 4]
    tiles = list(range(6)) if grp == 0 else [10, 6, 7, 8, 9]
    KT = cfg['KT']; LK = cfg.get('LK', 18)
    k.head()
    k.pf_code(); k.pf_tlb()
    if cfg.get('hs', 1): k.st_load()
    k.pf_setup()
    I(p, 's_mov_b32 s3, 896')
    for (e, a, b) in cfg.get('pfs', [(-1, 1, 2), (0, 2, 4), (2, 4, 7)]):
        if e == -1: k.pf_phase(a, b, dead=-900)
    if cfg.get('pfC', 4) == -1: k.pf_w2(dead=-890)
    k.pump(limit=cfg.get('first', 2), at=-800)
    k.setup_b(23)
    if cfg.get('st_c', 2) < 0: k.st_compute()
    def ab(t): return ACC + 16 * (t - 6 * grp)
    def wf(ks): return 16 * (ks % 3)
    def tile_mfma(t, ks):
        f = k.xfrag(t, ks)
        for s in range(4):
            d = vr(ab(t) + 4 * s, 4)
            mf(p, d, ar(wf(ks) + 4 * s, 4), f, d if ks else '0')
    per = 24 if grp == 0 else (20 if cfg.get('hs', 1) else 23)
    posu = [min(ks - min(LK, cfg.get('lk0', 99) + cfg.get('lk1', 3) * ks) / 24.0, KT - cfg.get('csearly', 0) - (cfg.get('lkend', 10) + (13 - ks) * cfg.get('ramp', 17)) / 24.0) for ks in range(14)]
    xfreed = set()
    def xf(pu):
        r = [j for j in range(6) if 2 * j + 2 <= pu and j not in xfreed]
        xfreed.update(r); return r
    assert KT == 12
    ce = cfg.get('csearly', 0)
    KE = KT - ce
    for ks in range(14):
        k.epoch(ks, p.nm - posu[ks] * per, xfree=xf(posu[ks]), plan={11: [2, 3], 12: [4], 13: [5, 6]})
        k.st_hooks(ks, 164)
        if ks == 7: assert 2 in xfreed
        if ks == 11: assert 4 in xfreed
        for m in range(2): k.wfrag(ks, m, wf(ks) + 8 * m)
        if ks < KE:
            for t in tiles: tile_mfma(t, ks)
    assert not k.dmaq
    def epi(t, n, pk):
        a = ab(t); st = STR[n]
        if pk:
            for i in range(0, 16, 2): I(p, f'v_pk_fma_f32 {vr(a+i,2)}, {vr(CS+i,2)}, {vr(st,2)}, {vr(a+i,2)} op_sel_hi:[1,0,1]')
            for i in range(0, 8, 2): I(p, f'v_pk_mul_f32 {vr(a+i,2)}, {vr(a+i,2)}, {vr(a+8+i,2)}')
            for i in range(0, 8, 2): I(p, f'v_pk_mul_f32 {vr(a+i,2)}, {vr(a+i,2)}, {vr(st,2)} op_sel:[0,1]')
        else:
            for i in range(16): I(p, f'v_fmac_f32 v{a+i}, v{CS+i}, v{st}')
            for i in range(8): I(p, f'v_mul_f32 v{a+i}, v{a+i}, v{a+8+i}')
            for i in range(8): I(p, f'v_mul_f32 v{a+i}, v{a+i}, v{st+1}')
        for i in range(4): I(p, f'v_cvt_pk_bf16_f32 v{a+8+i}, v{a+2*i}, v{a+2*i+1}')
        I(p, f'buffer_store_dwordx4 {vr(a+8,4)}, v{k.V_ST}, s[24:27], s46 offen offset:{256*t} {cfg["st_flags"]}', wr=[('tok_vq', 0)], dead=p.nm + 20 + 30 * n)
    nb = cfg.get('tab_after', 1)
    for j in xf(99): k.pending_free.append((('tok_xrd', j), ('tok_xfree', j)))
    def tab_reads():
        k.ep0 = None
        if cfg.get('thin', 1): p.dense_from = p.nm + cfg.get('td%d' % grp, 0)
        p.slack = cfg.get('sl%d' % grp, 0)
        for q in range(4):
            I(p, f'ds_read_b128 {vr(CS+4*q,4)}, v{k.V_CSA} offset:{16*q}', rd=[('tok_tab', 0)], wr=[('tok_lr', 0)], dead=k.lastbar + 2)
        for q, tt in enumerate(tiles):
            I(p, f'ds_read_b64 {vr(STR[q],2)}, v{k.V_TABR} offset:{128*tt}', rd=[('tok_tab', 0)], wr=[('tok_lr', 0)], dead=k.lastbar + 3 + q)
        for q, n in enumerate(range(7, cfg['ne'])): k.early_b(n, k.lastbar + 1 + 4 * q)
    seq = [(t, ks) for ks in range(KE, KT) for t in tiles if t != 10] + [(t, ks) for t in tiles if t != 10 for ks in range(KT, 14)]
    if grp:
        for ks in range(KE, 14): tile_mfma(10, ks)
        for q in range(4):
            k.masked(f'ds_write_b128 v{k.V_CSA}, {vr(ab(10)+4*q,4)} offset:{16*q}', 62, wr=[('tok_tw', 0)], dead=p.nm + 3)
        k.barrier(rd=[('tok_tw', 0)], wr=[('tok_tab', 0)], look=-4)
        tab_reads()
    nbm = ((4 if cfg.get('hs', 1) else 7) * (14 - KE) + 4 + 3) // 4 + cfg.get('nbx', 0)
    for n, (t, ks) in enumerate(seq):
        if (not grp) and n == nbm:
            k.barrier(wr=[('tok_tab', 0)], look=0); tab_reads()
        tile_mfma(t, ks)
    npk = 0
    for n, t in enumerate(tiles): epi(t, n, n >= len(tiles) - npk)
    k.barrier(wr=[('tok_vq', 0)], rd=[('tok_xrd', 6), ('tok_xrd', 5), ('tok_lr', 0)] + [('tok_bd', n) for n in range(2 + cfg.get('s2_npre', 2))], look=-400)
    p.ops[-1].text = '; (end barrier is executed at the start of stage 2)'
    if grp: I(p, 'v_mov_b32 v28, v164\nv_mov_b32 v29, v165', rd=[('tok_ep', 0)])
    return k

def gen_att(cfg, grp):
    k = S1(True, grp, cfg); p = k.p
    ACC, SACC, CSQ, CSV, BIAS, MSK, KADR = 64, 36, 48, 46, 160, 172, 25
    V_ST, V_EX, V_NM4, V_CV = 44, 45, 8, 24
    k.XR = [vr(r, 4) for r in ([36, 40, 80, 84, 60, 56, 52] if grp == 0 else [36, 40, 136, 140, 144, 148])]
    tiles = [3, 0, 1, 2] if grp == 0 else [6, 5, 4]
    qt = [1, 2, 3] if grp == 0 else [6, 5, 4]
    tb = 0 if grp == 0 else 4
    def ka(t, s=0): return (ACC + 24 * (t - tb) + 4 * s) if t >= tb else 152
    def va(t, s=0): return ACC + 24 * (t - tb) + 8 + 4 * s
    def qa(t, s=0): return ACC + 24 * (t - tb) + 16 + 4 * s
    VPK = [qa(0), 36] if grp == 0 else [136, 144]
    def vp(s, t): return VPK[s] + 2 * (t - (0 if grp == 0 else 3))
    def wf(ks, m): return 24 * (ks % 2) + 8 * m
    LK = cfg.get('LKA', 16)
    if cfg.get('thin', 1): p.dense_from = 9999
    k.head()
    k.pf_code(); k.pf_tlb()
    if cfg.get('hs', 1): k.st_load()
    k.pf_setup()
    I(p, 's_mov_b32 s3, 896')
    for (e, a, b) in cfg.get('pfs', [(-1, 1, 2), (0, 2, 4), (2, 4, 7)]):
        if e == -1: k.pf_phase(a, b, dead=-900)
    if cfg.get('pfC', 4) == -1: k.pf_w2(dead=-890)
    k.pump(limit=cfg.get('first_a', 3), at=-800)
    k.setup_b(V_ST)
    I(p, 'v_lshlrev_b32 v4, 2, v3\nv_sub_u32 v4, v2, v4\nv_mov_b32 v5, 0xff800000')
    for r in range(4):
        I(p, f"""v_subrev_u32 v6, {r}, v4
                 v_and_b32 v7, 0x80000001, v6
                 v_cmp_eq_u32 vcc, 0, v7
                 v_cndmask_b32 v{BIAS+r}, v5, 0, vcc
                 v_cmp_eq_u32 vcc, 0x80000000, v7
                 v_cndmask_b32 v{BIAS+4+r}, v5, 0, vcc""")
        if grp == 0: I(p, f'v_cndmask_b32 v{BIAS+8+r}, v{BIAS+4+r}, v5, s[54:55]')
    I(p, """v_and_b32 v6, 1, v2
            v_cmp_eq_u32 vcc, 1, v6
            v_mov_b32 v7, 0xffff
            v_mov_b32 v8, 0xffff0000
            v_cndmask_b32 v7, v7, v8, vcc
            v_lshl_add_u32 v6, v3, 2, v6""")
    for b in range(2):
        I(p, f"""v_add_u32 v8, {2*b}, v6
                 v_cmp_gt_u32 vcc, v8, v2
                 v_cndmask_b32 v{MSK+b}, 0, v7, vcc
                 v_cndmask_b32 v{MSK+2+b}, v7, 0, vcc
                 v_subrev_u32 v9, 16, v8
                 v_cndmask_b32 v8, v8, v9, vcc
                 v_lshlrev_b32 v8, 2, v8
                 v_add_u32 v{KADR+b}, 1024, v8""")
    I(p, f"""v_lshlrev_b32 v{V_NM4}, 4, v3
             s_lshl_b32 s52, s29, 7
             s_add_u32 s52, s52, {CVL}
             v_lshl_add_u32 v{V_CV}, v2, 3, s52
             s_lshl_b32 s52, s29, 11
             s_add_u32 s52, s52, {LA + 14336}
             v_lshl_add_u32 v{V_EX}, v1, 4, s52
             s_mov_b32 s38, 0
             s_mov_b32 s39, 0xffff0000""")
    def m_kq(t, ks, f):
        for s in range(2):
            d = vr(ka(t, s), 4); mf(p, d, ar(wf(ks, 1) + 4 * s, 4), f, d if ks else '0')
        if t:
            for s in range(2):
                d = vr(qa(t, s), 4); mf(p, d, ar(wf(ks, 0) + 4 * s, 4), f, d if ks else '0')
    def m_v(t, ks, f):
        for s in range(2):
            d = vr(va(t, s), 4); mf(p, d, f, ar(wf(ks, 2) + 4 * s, 4), d if ks else '0')
    for ks in range(14):
        nl = cfg.get('att_loop', 4)
        k.epoch(ks, min(LK, cfg.get('lk0', 99) + cfg.get('lk1', 3) * ks), plan={e: [n for n in v if n < nl] for e, v in {11: [2], 12: [3, 4], 13: [5, 6, 7]}.items()})
        k.st_hooks(ks, 168)
        for m in (1, 0, 2): k.wfrag(ks, m, wf(ks, m))
        fs = {}
        for n, t in enumerate(tiles):
            fs[t] = k.xfrag(t, ks)
            m_kq(t, ks, fs[t])
            if ks < 13 or n == 0: m_v(t, ks, fs[t])
            if ks == 13 and n == 0 and grp:
                for q, r in enumerate((qa(6), qa(6, 1), ka(6), ka(6, 1))):
                    k.masked(f'ds_write_b128 v{k.V_CSA}, {vr(r,4)} offset:{16*q}', 62, wr=[('tok_tw', 0)], dead=p.nm + 3)
                for s in range(2):
                    k.masked(f'ds_write_b32 v{V_CV}, v{va(6,s)+3} offset:{4*s}', 38, wr=[('tok_tw', 0)], dead=p.nm + 4)
        if ks == 13:
            k.barrier(rd=([('tok_tw', 0)] if grp else []) + [('tok_xrd', 6), ('tok_xrd', 5)], wr=[('tok_tab', 0)], look=2 if grp else 4)
            for t in tiles[1:]: m_v(t, ks, fs[t])
    assert not k.dmaq
    for q in range(4): I(p, f'ds_read_b128 {vr(CSQ+4*q,4)}, v{k.V_CSA} offset:{16*q}', rd=[('tok_tab', 0)], wr=[('tok_lr', 0)], dead=k.lastbar + 1)
    CSVP = [CSV, 22]
    for s in range(2): I(p, f'ds_read2_b32 {vr(CSVP[s],2)}, v{V_CV} offset0:{s} offset1:{s}', rd=[('tok_tab', 0)], wr=[('tok_lr', 0)], dead=k.lastbar + 1)
    NMR = [4, 6, 14, 20]; NM4 = [16, 28, 32, 16]
    ebq = []
    def eb1():
        if ebq:
            n = ebq.pop(0); bdma(p, n, rd=[('tok_tab', 0)])
    def fix(base, cs, nm):
        for i in range(0, 8, 2): I(p, f'v_pk_fma_f32 {vr(base+i,2)}, {vr(cs+i,2)}, {vr(nm,2)}, {vr(base+i,2)}')
        for i in range(4): I(p, f'v_cvt_pk_bf16_f32 v{base+i}, v{base+2*i}, v{base+2*i+1}')
    def fix_v(t, n):
        nm = NM4[n]
        for s in range(2):
            a = va(t, s)
            for i in (0, 2): I(p, f'v_pk_fma_f32 {vr(a+i,2)}, {vr(nm+i,2)}, {vr(CSVP[s],2)}, {vr(a+i,2)}')
            for i in range(2): I(p, f'v_cvt_pk_bf16_f32 v{vp(s,t)+i}, v{a+2*i}, v{a+2*i+1}')
    for n, t in enumerate(tiles):
        I(p, f'ds_read2_b32 {vr(NMR[n],2)}, v{k.V_TABR} offset0:{16*t} offset1:{16*t}', rd=[('tok_tab', 0)], wr=[('tok_lr', 0)], dead=k.lastbar + 1)
    def rd_nm4(n): I(p, f'ds_read_b128 {vr(NM4[n],4)}, v{V_NM4} offset:{64*tiles[n]}', rd=[('tok_tab', 0)], wr=[('tok_lr', 0)], dead=k.lastbar + 2)
    rd_nm4(0); rd_nm4(1)
    p.tail_fixed = len(p.ops)
    for n, t in enumerate(tiles):
        fix(ka(t), CSQ + 8, NMR[n])
        if n == 0:
            fix_v(t, 0)
            if grp == 0:
                I(p, f'ds_write_b128 v{V_EX}, {vr(ka(3),4)}', rd=[('tok_tab', 0)], wr=[('tok_ex', 0)])
                for s in range(2): I(p, f'ds_write_b64 v{V_EX}, {vr(vp(s,3),2)} offset:{1024 + 8*s}', rd=[('tok_tab', 0)], wr=[('tok_ex', 0)])
        if t: fix(qa(t), CSQ, NMR[n])
        eb1()
    k.barrier(rd=[('tok_ex', 0)] if grp == 0 else R('v', qa(4), 4), wr=[('tok_exr', 0)], look=0)
    if grp:
        I(p, f'ds_read_b128 {vr(ka(3),4)}, v{V_EX}', rd=[('tok_exr', 0)], wr=[('tok_lr', 0)])
        for s in range(2): I(p, f'ds_read_b64 {vr(vp(s,3),2)}, v{V_EX} offset:{1024 + 8*s}', rd=[('tok_exr', 0)], wr=[('tok_lr', 0)])
    for n, t in enumerate(qt):
        T = CSQ + 5 * n
        I(p, f'ds_read_b32 v{T}, v{k.V_TABR} offset:{1024+64*t}', rd=[('tok_tab', 0)], wr=[('tok_lr', 0)])
        for b in range(2): I(p, f'ds_read_b32 v{T+1+b}, v{KADR+b} offset:{64*t}', rd=[('tok_tab', 0)], wr=[('tok_lr', 0)])
    for n in range(2, len(tiles)): rd_nm4(n)
    for t in qt:
        mf(p, vr(qa(t, 1), 4), vr(ka(t), 4), vr(qa(t), 4), vr(BIAS, 4))
        mf(p, vr(ka(t, 1), 4), vr(ka(t - 1), 4), vr(qa(t), 4), vr(BIAS + (8 if t == 1 else 4), 4))
    for n, t in enumerate(tiles[1:]): fix_v(t, n + 1); eb1()
    SC = 0.18898223650461362 * 1.4426950408889634
    def softmax(t, n):
        a, b, T = qa(t, 1), ka(t, 1), CSQ + 5 * n
        return f"""v_mul_f32 v{T}, {f32(SC)}, v{T}
                 v_mul_f32 v{T+3}, v{T}, v{T+1}
                 v_mul_f32 v{T+4}, v{T}, v{T+2}
                 v_max3_f32 v{a}, v{a}, v{a+1}, v{b}
                 v_max3_f32 v{a+2}, v{a+2}, v{a+3}, v{b+2}
                 v_max_f32 v{a}, v{a}, v{b+1}
                 v_max_f32 v{a+2}, v{a+2}, v{b+3}
                 v_mul_f32 v{a}, v{a}, v{T+3}
                 v_mul_f32 v{a+2}, v{a+2}, v{T+4}
                 v_max_f32 v{a+1}, v{a}, v{a+2}
                 v_max_f32 v{a+3}, v{a}, v{a+2}
                 v_permlane32_swap_b32 v{a+1}, v{a+3}
                 v_max_f32 v{b}, v{a+1}, v{a+3}
                 v_max_f32 v{b+1}, v{a+1}, v{a+3}
                 v_permlane16_swap_b32 v{b}, v{b+1}
                 v_max_f32 v{b}, v{b}, v{b+1}
                 v_sub_f32 v{a}, v{a}, v{b}
                 v_sub_f32 v{a+2}, v{a+2}, v{b}
                 v_exp_f32 v{a}, v{a}
                 v_exp_f32 v{a+2}, v{a+2}
                 v_add_f32 v{a+1}, v{a}, v{a+2}
                 v_add_f32 v{a+3}, v{a}, v{a+2}
                 v_permlane32_swap_b32 v{a+1}, v{a+3}
                 v_mul_f32 v{a}, v{a}, v{T+1}
                 v_mul_f32 v{a+2}, v{a+2}, v{T+2}
                 v_add_f32 v{b}, v{a+1}, v{a+3}
                 v_add_f32 v{b+1}, v{a+1}, v{a+3}
                 v_permlane16_swap_b32 v{b}, v{b+1}
                 v_add_f32 v{b}, v{b}, v{b+1}
                 v_rcp_f32 v{b}, v{b}
                 v_mul_f32 v{a}, v{a}, v{b}
                 v_mul_f32 v{a+2}, v{a+2}, v{b}
                 v_cvt_pk_bf16_f32 v{b+2}, v{a}, v{a}
                 v_cvt_pk_bf16_f32 v{b+3}, v{a+2}, v{a+2}
                 v_and_b32 v{a}, v{b+2}, v{MSK}
                 v_and_b32 v{a+1}, v{b+3}, v{MSK+1}
                 v_and_b32 v{a+2}, v{b+2}, v{MSK+2}
                 v_and_b32 v{a+3}, v{b+3}, v{MSK+3}""".split('\n')
    L = [softmax(t, n) for n, t in enumerate(qt)]
    for i in range(len(L[0])):
        for q in range(3): I(p, L[q][i])
        if i % 12 == 5: eb1()
    tail = p.ops[p.tail_fixed:]; p.ops = p.ops[:p.tail_fixed]
    m0 = len(p.ops)
    for n in range(cfg.get('att_loop', 4), cfg['ne']): bdma(p, n, rd=[('tok_tab', 0)])
    bops = p.ops[m0:]; p.ops = p.ops[:m0]
    units, cur = [], []
    for o in bops:
        cur.append(o)
        if o.kind == 'dma': units.append(cur); cur = []
    units[-1] += cur
    step = len(tail) * cfg.get('att_sp', 0.9) / len(units)
    nxt = 0.0
    for i, o in enumerate(tail):
        if units and i >= nxt:
            u = units.pop(0); p.ops += u; nxt += step
        p.ops.append(o)
    for u in units: p.ops += u
    for i, o in enumerate(p.ops): o.idx = i
    for t in qt:
        for s in range(2): mf(p, vr(va(t, s), 4), vr(vp(s, t - 1), 4), vr(qa(t, 1), 4), '0')
    for t in qt:
        a, d = va(t), qa(t)
        for i in range(4): I(p, f'v_cvt_pk_bf16_f32 v{d+i}, v{a+2*i}, v{a+2*i+1}')
        I(p, f'buffer_store_dwordx4 {vr(d,4)}, v{V_ST}, s[24:27], s46 offen offset:{256*(t-1)} {cfg["st_flags"]}', wr=[('tok_vq', 0)])
    k.barrier(wr=[('tok_vq', 0)], rd=[('tok_lr', 0)] + [('tok_bd', n) for n in range(2 + cfg.get('s2_npre', 2))], look=-99)
    p.ops[-1].text = '; (end barrier is executed at the start of stage 2)'
    if grp: I(p, 'v_mov_b32 v28, v168\nv_mov_b32 v29, v169')
    return k

FULL = [1]
def flag_off():
    if FULL[0]:
        return """v_lshl_add_u32 v7, v1, 3, s101
  v_cmp_gt_u32 vcc, 16, v1
  s_nop 1
  v_cndmask_b32 v7, -16, v7, vcc"""
    return """v_mov_b32 v7, s101
  v_cmp_eq_u32 vcc, 0, v1
  s_nop 1
  v_cndmask_b32 v7, -16, v7, vcc"""
SLOW = []
def nonce_check(tag, V=28, Z=6):
    SLOW.append(f"""L_pn{tag}:
  s_mov_b32 s65, 0
L_po{tag}:
  v_mov_b32 v{Z}, 0
  s_sleep 4
  global_load_dwordx2 v[{V}:{V+1}], v{Z}, s[60:61] sc1
  s_add_u32 s65, s65, 1
  s_waitcnt vmcnt(0)
  v_cmp_ne_u32 vcc, 0, v{V}
  s_cmp_ge_u32 s65, 0x40000
  s_cbranch_scc1 L_ps{tag}
  s_nop 3
  s_cbranch_vccz L_po{tag}
  s_branch L_ps{tag}
""")
    return f"""v_cmp_ne_u32 vcc, 0, v{V}
  s_nop 4
  s_cbranch_vccz L_pn{tag}
L_ps{tag}:"""
PUB = 'buffer_store_dwordx2 v[28:29], v7, s[24:27], 0 offen sc1'

def gen_s2(cfg, sg):
    p = Prog(vm_lat=cfg.get('s2_lat', 900), gap=cfg.get('s2_gap', 24))
    N = 16 if sg else 19
    ACC, NB, AD = 32, 10, 3
    AR = [vr(176 - 8 * AD + 4 * i, 4) for i in range(2 * AD)]
    def win(n):
        off = rowaddr(ROWSEQ[n]) - LA
        w = 0 if off < 55296 else (1 if off < 55296 + 65536 else 2)
        return w, off - (0, 55296, 120832)[w]
    def fread(n, tok, **kw):
        w, off = win(n)
        for ct in range(4):
            for e in range(2):
                I(p, f'ds_read_b64_tr_b16 {fr(n, 4*ct+2*e, 2)}, v{16+4*w+ct} offset:{off + e*2048}', rd=[tok], wr=[('tok_rd', n)], **kw)
    def bar(name, rd=(), **kw):
        p.add('s_barrier', 'bar', list(rd), [('tok_bar', 0), ('tok_b', name), ('tok_vq', 0)], **kw)
        return ('tok_b', name)
    def bd(n, rd=()): bdma(p, n, rd=rd)
    t0 = ('tok_b', 'entry')
    p.add('; (stage-1 stores outstanding)', 'vms', [], [('tok_ack', 0), ('tok_vq', 0)])
    ne = cfg['ne']
    if 'p1' in cfg and not sg: p.add('s_setprio 0', 'salu', [], [])
    tr_setup(p, 16, LA, 4)
    for w, o in ((1, 55296), (2, 120832)):
        for ct in range(4): I(p, f'v_add_u32 v{16+4*w+ct}, {o}, v{16+ct}')
    if sg: p.add('s_setprio 3', 'salu', [], [])
    if sg: p.add(flag_off(), 'valu', [('v', 1)], [('v', 7), ('vcc', 0)])
    I(p, f's_lshl_b32 s47, s30, 2\ns_add_u32 s47, s47, {PFL}\nv_mov_b32 v30, s47\nv_mov_b32 v31, 0\nv_xor_b32 v0, 4, v30')
    def publish(bp):
        if sg: p.add(nonce_check('a') + '\n  s_cmp_lg_u32 s30, 6\n  s_cbranch_scc1 L_pea\n  ' + PUB + '\nL_pea:', 'salu', [bp, ('s', 30)] + R('v', 6, 2) + R('v', 28, 2), R('v', 6, 1) + R('v', 28, 2) + [('tok_vq', 0), ('tok_nonce', 0), ('vcc', 0)])
    be = bar('entry', [('tok_ack', 0)] if cfg.get('pe', 1) else [])
    if cfg.get('pe', 1): publish(be)
    for n in range(ne, 11): bd(n)
    mid = 0
    npre = cfg.get('s2_npre', 2)
    for n in range(2, 2 + mid): fread(n, t0)
    if mid:
        bm = bar('m', [('tok_rd', n) for n in range(2, 2 + mid)])
        for n in range(11, 11 + mid): bd(n, [bm])
    for n in range(2, 2 + npre): fread(n, t0)
    mark0 = len(p.ops)
    VXO, VAO, XR = 13, 144, 4
    I(p, f"""s_lshl_b32 s45, s66, 1
            s_add_u32 s45, s45, s31
            s_lshl_b32 s45, s45, 5
            s_lshl_b32 s47, s32, 5
            s_lshl_b32 s46, s67, 7
            s_add_u32 s46, s46, s47
            v_mul_u32_u24 v40, {CH}, v3
            s_mov_b32 s47, 47663
            s_mov_b32 s52, 44621""")
    for t in range(2):
        I(p, f"""v_add_u32 v44, s45, v2
                 v_add_u32 v44, {16*t}, v44
                 v_mul_lo_u32 v45, v44, s47
                 v_lshrrev_b32 v45, 23, v45
                 v_mul_u32_u24 v46, 176, v45
                 v_sub_u32 v46, v44, v46
                 v_mul_u32_u24 v41, 171, v45
                 v_min_u32 v42, 1873, v41
                 v_add_u32 v42, v42, v46
                 v_sub_u32 v41, v42, v41
                 v_cmp_gt_u32 vcc, 171, v41
                 v_mul_u32_u24 v41, 896, v42
                 v_lshl_add_u32 v41, v3, 3, v41
                 v_add_u32 v41, s46, v41
                 v_cndmask_b32 v{VXO+t}, -16, v41, vcc""")
        if sg:
            I(p, """v_min_u32 v42, 2047, v42
                    v_mul_lo_u32 v45, v42, s52
                    v_lshrrev_b32 v45, 22, v45
                    v_mul_u32_u24 v46, 94, v45
                    v_min_u32 v46, 1953, v46
                    v_sub_u32 v42, v42, v46
                    v_mul_u32_u24 v45, 96, v45
                    v_add_u32 v44, v42, v45""")
        I(p, f'v_lshl_add_u32 v{VAO+t}, v44, 4, v40')
    I(p, f"""s_mul_i32 s53, s32, {0 if sg else 19*4*CH}
            s_add_u32 s53, s53, {0 if sg else 64*CH}
            s_add_u32 s54, s53, {N*4*CH}
            s_mul_i32 s55, s42, {4*CH}
            s_add_u32 s55, s55, s53
            s_mov_b32 s18, 1835008
            s_mov_b32 s19, 0x20000
            s_mov_b32 s20, s24
            s_mov_b32 s21, s25
            s_mov_b32 s22, {AH_BYTES}
            s_mov_b32 s23, 0x20000""")
    if sg:
        mark1 = len(p.ops)
        G(p, """s_lshl_b32 s47, s66, 6
                s_mul_i32 s48, s47, 47663
                s_lshr_b32 s48, s48, 23
                s_mul_i32 s59, s48, 5
                s_cmp_eq_u32 s48, 11
                s_cselect_b32 s59, 63, s59
                s_sub_u32 s59, s47, s59
                s_mul_i32 s50, s59, 44621
                s_lshr_b32 s50, s50, 22
                s_add_u32 s47, s47, 63
                s_mul_i32 s49, s47, 47663
                s_lshr_b32 s49, s49, 23
                s_mul_i32 s59, s49, 5
                s_cmp_eq_u32 s49, 11
                s_cselect_b32 s59, 63, s59
                s_sub_u32 s59, s47, s59
                s_min_u32 s59, s59, 2047
                s_mul_i32 s51, s59, 44621
                s_lshr_b32 s51, s51, 22
                s_mul_i32 s48, s48, 14
                s_mul_i32 s49, s49, 14
                s_sub_u32 s49, s49, 14
                s_lshl_b32 s50, s50, 2
                s_add_u32 s50, s50, 140
                s_lshl_b32 s51, s51, 2
                s_add_u32 s51, s51, 136""")
        I(p, f"""v_min_u32 v47, 35, v1
                 v_mov_b32 v15, s48
                 v_mov_b32 v48, s49
                 v_cmp_le_u32 vcc, 14, v47
                 v_cndmask_b32 v15, v15, v48, vcc
                 v_mov_b32 v48, s50
                 v_cmp_le_u32 vcc, 28, v47
                 v_cndmask_b32 v15, v15, v48, vcc
                 v_mov_b32 v48, s51
                 v_cmp_le_u32 vcc, 32, v47
                 v_cndmask_b32 v15, v15, v48, vcc
                 v_add_u32 v15, v15, v47
                 v_lshlrev_b32 v15, 7, v15
                 v_add_u32 v15, {FLG}, v15
                 s_mov_b32 s48, 0x0fffffff
                 s_mov_b32 s49, 0
                 s_mov_b32 s50, 0xf0000000
                 s_mov_b32 s51, 15""")
    late_setup = p.ops[mark0:]; p.ops = p.ops[:mark0]
    nfl = 0
    if sg:
        nfl = len(late_setup) - (mark1 - mark0)
        late_setup = late_setup[mark1 - mark0:] + late_setup[:mark1 - mark0]
    def drip(k):
        for _ in range(k):
            if late_setup:
                o = late_setup.pop(0); o.idx = len(p.ops); p.ops.append(o)
    VW = 0
    I(p, 'ds_write_b32 v30, v31 offset:64', wr=[('tok_pfz', 0)])
    def poll(tag, mask, first):
        ld = 'buffer_load_dwordx2 v[4:5], v15, s[24:27], 0 offen ' + cfg.get('poll_fl', 'sc1') + '\n  s_waitcnt vmcnt(0)\n  '
        txt = f"""s_mov_b32 s65, 0
  {ld if first else ''}
L_pl{tag}:
  v_cmp_ne_u64 vcc, v[4:5], v[28:29]
  s_add_u32 s65, s65, 1
  s_cmp_ge_u32 s65, 0x40000
  s_cbranch_scc1 L_pd{tag}
  s_nop 1
  s_and_b64 vcc, vcc, s[{mask}:{mask+1}]
  s_cbranch_scc0 L_pd{tag}
  s_sleep {cfg.get('poll_sleep', 3)}
  {ld}s_branch L_pl{tag}
L_pd{tag}:"""
        p.add(txt, 'salu', [('v', 15), ('v', 28), ('v', 29), ('v', 4), ('v', 5), ('tok_nonce', 0)] + R('s', mask, 2),
              [('v', 4), ('v', 5), ('vcc', 0), ('tok_poll', tag), ('tok_vq', 0)])
        return ('tok_poll', tag)
    bp = bar('p', [('tok_ack', 0), ('tok_pfz', 0)] + [('tok_rd', n) for n in range(2, 2 + npre)])
    if not cfg.get('pe', 1): publish(bp)
    p.add('s_waitcnt lgkmcnt(0)', 'salu', [bp], R('s', 16, 2))
    def pflag(val, tag, **kw):
        p.add(f"""L_pf{tag}{sg}:
  v_readfirstlane_b32 s64, v31
  s_nop 1
  s_cmp_ge_u32 s64, {val}
  s_cbranch_scc1 L_pfd{tag}{sg}
  ds_read_b32 v31, v30 offset:64
  s_waitcnt lgkmcnt(0)
  s_branch L_pf{tag}{sg}
L_pfd{tag}{sg}:""", 'rfl', [('v', 30), ('v', 31)], [('v', 31), ('s', 64), ('tok_pfo', tag), ('tok_vq', 0)], **kw)
        return ('tok_pfo', tag)
    VV = 146
    def setf(val, rd, **kw):
        I(p, f'v_mov_b32 v{VV}, {val}')
        I(p, f'ds_write_b32 v{VW}, v{VV} offset:64', rd=rd, wr=[('tok_pfz', 0), ('tok_vq', 0)], **kw)
    def getf(**kw): I(p, 'ds_read_b32 v31, v30 offset:64', rd=[('tok_pfz', 0)], wr=[('tok_vq', 0)], **kw)
    quick = 1
    rq = list(range(2 + npre, ne))
    first = list(range(11, min(N, 11 + npre)))
    for n in first:
        bd(n, [bp])
        for _ in range(-(-len(rq) // max(1, len(first)))  if n != first[-1] else 99):
            if rq and (len(rq) > 0): fread(rq.pop(0), t0)
            if n != first[-1] and _ >= 1: break
    while rq: fread(rq.pop(0), t0)
    pq = cfg.get('pq', 0)
    if sg and pq: drip(nfl)
    b2 = bar('r', [('tok_rd', n) for n in range(2 + npre, ne)] + [('tok_bd', n) for n in range(ne, 10)])
    for n in range(ne, 10): fread(n, b2)
    rest = list(range(11 + npre, min(N, 9 + ne)))
    post = list(range(9 + ne, N))
    per = (len(late_setup) + len(rest) - 1) // max(1, len(rest))
    if sg:
        drip({0: 999, 1: 0, 2: 30}[pq])
        I(p, 'buffer_load_dwordx2 v[4:5], v15, s[24:27], 0 offen sc1', rd=[('tok_nonce', 0)], wr=[('tok_vq', 0)])
    for n in rest:
        bd(n, [b2]); drip(per)
    drip(999)
    bgo = bar(4, ([poll(0, 48, not quick)] if sg else []) + [('tok_rd', n) for n in range(ne, 10)])
    go = poll(1, 50, False) if sg else bgo
    if sg: p.add('s_setprio 0', 'salu', [], [])
    if cfg.get('prio'):
        if sg: p.add('s_setprio 3', 'salu', [], [])
        else: p.add(f's_cmp_eq_u32 s32, 0\n  s_cbranch_scc1 L_np\n  s_setprio 1\n  s_cmp_eq_u32 s32, 1\n  s_cbranch_scc1 L_np\n  s_setprio 2\nL_np:' if cfg['prio'] == 2 else 's_nop 0', 'salu', [], [])
    p.fixed = len(p.ops)
    def aload(n):
        for t in range(2):
            I(p, f'v_add_u32 v{8+2*t}, s55, v{VAO+t}', rd=[go])
            I(p, f'buffer_load_dwordx4 {AR[(2*n+t) % (2*AD)]}, v{8+2*t}, s[20:23], 0 offen sc1', rd=[go], wr=[('tok_vq', 0)], dead=(n - AD) * 8 + 4 * t + 5)
        G(p, f's_add_u32 s55, s55, {4*CH}\ns_cmp_eq_u32 s55, s54\ns_cselect_b32 s55, s53, s55')
    for n in range(AD): aload(n)
    for n in range(N):
        if n == 3:
            for t in range(2):
                I(p, f'buffer_load_dwordx2 {vr(XR+2*t,2)}, v{VXO+t}, s[12:15], 0 offen', wr=[('tok_vq', 0)], dead=p.nm + 2)
        if quick:
            if post and n < 3: bdma(p, post.pop(0), rd=[bgo], early=p.nm, dead=p.nm + 1)
            nl = 0 if ne == 10 else 5
            if n == nl: setf(3, [('tok_bd', q) for q in range(NB, N)], early=p.nm - 1, dead=p.nm + 0.5)
            if n == nl + 1: getf(early=p.nm - 2, dead=p.nm)
            if n == nl + 2:
                land = pflag(3, 'l', early=p.nm - 3, dead=p.nm - 1)
                for q in range(NB, min(N, NB + nl + 2)): fread(q, land, dead=min(p.nm + 10 + 4 * (q - NB), 8 * q - 8))
        if n == 11: setf(4, [('tok_rd', q) for q in range(NB, NB + 3)], early=p.nm, dead=p.nm + 2)
        if n == N - 2: getf(early=p.nm, dead=p.nm + 2)
        for t in range(2):
            for ct in range(4):
                d = vr(ACC + 16 * t + 4 * ct, 4)
                mf(p, d, fr(n, 4 * ct, 4), AR[(2 * n + t) % (2 * AD)], d if n else '0')
        if n + AD < N: aload(n + AD)
        if n + NB < N and n >= nl + 2: fread(n + NB, land if quick else bgo, dead=p.nm + 10)
    I(p, f"""s_lshl_b32 s47, s31, 11
            v_lshl_add_u32 v12, v1, 4, s47
            v_lshl_add_u32 v16, v1, 4, s76""")
    fre = pflag(4, 'c', early=p.nm - 6)
    for c in range(1, 4):
        for t in range(2):
            I(p, f'ds_write_b128 v16, {vr(ACC+16*t+4*c,4)} offset:{rowaddr(ROWSEQ[9+c]) + 1024*t}', rd=[fre], wr=[('tok_xw', 0)])
    XU, E, RX = 64, 72, 80
    for i in range(4):
        I(p, f'v_lshlrev_b32 v{XU+2*i}, 16, v{XR+i}\nv_and_b32 v{XU+2*i+1}, 0xffff0000, v{XR+i}')
    def saddr(src, c): return rowaddr(ROWSEQ[9 + c]) + src * 4096
    if sg:
        for q in range(3): I(p, f'v_add_u32 v{17+q}, {saddr(q, q ^ 3)}, v12')
    else:
        tab = [[saddr(src, src ^ kq) for src in ((kq + 1) % 3, (kq + 2) % 3, 3)] for kq in range(3)]
        for q in range(3):
            G(p, f"""s_mov_b32 s{48+q}, {tab[0][q]}
                     s_cmp_eq_u32 s32, 1
                     s_cselect_b32 s{48+q}, {tab[1][q]}, s{48+q}
                     s_cmp_eq_u32 s32, 2
                     s_cselect_b32 s{48+q}, {tab[2][q]}, s{48+q}""")
            I(p, f'v_add_u32 v{17+q}, s{48+q}, v12')
    b6 = bar(6, [('tok_xw', 0)], early=1e6)
    own = [ACC, ACC + 2, ACC + 16, ACC + 18]
    for q in range(3):
        for t in range(2): I(p, f'ds_read_b128 {vr(RX+8*q+4*t,4)}, v{17+q} offset:{1024*t}', rd=[b6])
    if sg:
        for i in range(0, 8, 2): I(p, f'v_pk_add_f32 {vr(RX+i,2)}, {vr(RX+i,2)}, {vr(RX+8+i,2)}')
        for i in range(0, 8, 2): I(p, f'v_pk_add_f32 {vr(RX+i,2)}, {vr(RX+i,2)}, {vr(RX+16+i,2)}')
        S = own
    else:
        for i in range(0, 8, 2): I(p, f'v_pk_add_f32 {vr(RX+i,2)}, {vr(RX+i,2)}, {vr(own[i//2],2)}')
        for i in range(0, 8, 2): I(p, f'v_pk_add_f32 {vr(RX+i,2)}, {vr(RX+i,2)}, {vr(RX+8+i,2)}')
        S = [RX + 16 + i for i in range(0, 8, 2)]
    for i in range(8): I(p, f'v_mul_f32 v{E+i}, {f32(-1.4426950408889634)}, v{RX+i}')
    for i in range(8): I(p, f'v_exp_f32 v{E+i}, v{E+i}')
    for i in range(0, 8, 2): I(p, f'v_pk_mul_f32 {vr(RX+i,2)}, {vr(RX+i,2)}, {vr(S[i//2],2)}')
    for i in range(8): I(p, f'v_add_f32 v{E+i}, 1.0, v{E+i}')
    for i in range(8): I(p, f'v_rcp_f32 v{E+i}, v{E+i}')
    for i in range(0, 8, 2): I(p, f'v_pk_fma_f32 {vr(XU+i,2)}, {vr(RX+i,2)}, {vr(E+i,2)}, {vr(XU+i,2)}')
    for i in range(4): I(p, f'v_cvt_pk_bf16_f32 v{XR+i}, v{XU+2*i}, v{XU+2*i+1}')
    for t in range(2):
        I(p, f'buffer_store_dwordx2 {vr(XR+2*t,2)}, v{VXO+t}, s[16:19], 0 offen {cfg.get("ofl", "")}')
    class K: pass
    k = K(); k.p = p
    return k

def stamp(cfg, region, drain):
    if not cfg['stamp']: return ''
    mv = ''.join(f'  v_mov_b32 v{44+i}, s{82+2*i}\n' for i in range(9))
    return f'''  s_nop 7
{'  s_waitcnt vmcnt(0)' if drain else ''}
  s_memtime s[20:21]
  s_memrealtime s[22:23]
  s_waitcnt lgkmcnt(0)
  s_sub_u32 s20, s20, s78
  s_mov_b32 s16, s24
  s_mov_b32 s17, s25
  s_mov_b32 s18, 0x10000000
  s_mov_b32 s19, 0x20000
  s_lshl_b32 s3, s2, 3
  s_add_u32 s3, s3, s30
  s_lshl_b32 s3, s3, 6
  s_add_u32 s3, s3, {region}
  v_mov_b32 v40, s20
  v_mov_b32 v41, s80
  v_mov_b32 v42, s22
  v_mov_b32 v43, s78
  v_mov_b32 v39, 0
{mv}  s_mov_b64 exec, 1
  buffer_store_dwordx4 v[40:43], v39, s[16:19], s3 offen
  buffer_store_dwordx4 v[44:47], v39, s[16:19], s3 offen offset:16
  buffer_store_dwordx4 v[48:51], v39, s[16:19], s3 offen offset:32
  buffer_store_dword v52, v39, s[16:19], s3 offen offset:48
  s_mov_b64 exec, -1
  s_nop 1
'''

def fin(k, name, cfg):
    n = k.p.nm; st = cfg['stamp']
    mode = 0
    if st: mode = 'bars' if (name.startswith('s2') and cfg.get('bars', 1)) else ('pro' if st == 'pro' else max(1, (n + 6) // 7 - 1))
    if st and 'b1' in cfg and not name.startswith('s2'): mode = ('b', cfg['b1'])
    r = finalize(k.p, name, mode)
    if cfg.get('rt', 1): r = r.replace('s_memtime', 's_memrealtime')
    return r, sum(1 for o in k.p.ops if o.kind == 'bar')

def build(cfg):
    FULL[0] = cfg.get('fullflag', 1)
    hdr = open('cdna_kernels/' + NAME + '.s.ref').read().split('\n')
    out = [l for l in hdr if l.startswith(';') and '@launch' not in l and 'Override launch' not in l and 'grid=ceil' not in l]
    KN = NAME + '_kernel'
    out.append('; @launch grid=(256,1,1) block=(512,1,1) lds=163840')
    out += [
        '; Generated by gen/gen4.py + gen/sched.py (own generator: static MFMA-gap scheduler, waitcnt and wait-state insertion).',
        '; One fused kernel, 256 workgroups x 8 waves, one per CU.',
        ';  stage 1: 168 workgroups gate/up GEMM (LayerNorm folded into the epilogue: rs*(xW - m*colsum(W))), 88 workgroups',
        ';           q/k/v GEMM + windowed softmax attention on MFMA; h and o go to d_ws in MFMA-fragment order (write-through).',
        ';  stage 2: 231 tiles of 64x64: d = h*w_down, s = o*wo, out = x + s*silu(d).',
        ';  hand-offs: sc1 stores drained before a flag store, sc1 polls and loads; flags and row statistics carry a per-launch',
        ';           nonce published through d_debug, so stale words in d_ws are never taken for this launch\'s.']
    s = '\n'.join(out) + '\n.amdgcn_target "amdgcn-amd-amdhsa--gfx950"\n.text\n'
    s += f'.globl {KN}\n.p2align 8\n.type {KN},@function\n{KN}:\n'
    MAP = '''  s_mul_i32 s58, s57, 37
  s_lshr_b32 s58, s58, 8
  s_mul_i32 s59, s58, 7
  s_sub_u32 s59, s57, s59
  s_lshr_b32 s60, s56, 1
  s_mul_i32 s60, s60, 3
  s_add_u32 s58, s58, s60
  s_and_b32 s60, s56, 1
  s_mul_i32 s60, s60, 7
  s_add_u32 s59, s59, s60
''' if not cfg.get('m3', 0) else '''  s_and_b32 s60, s56, 3
  s_mul_i32 s60, s60, 21
  s_add_u32 s60, s60, s57
  s_mul_i32 s59, s60, 43
  s_lshr_b32 s59, s59, 8
  s_mul_i32 s58, s59, 6
  s_sub_u32 s58, s60, s58
  s_lshr_b32 s60, s56, 2
  s_mul_i32 s60, s60, 6
  s_add_u32 s58, s58, s60
'''
    if cfg['stamp']: s += '  s_memtime s[78:79]\n  s_memrealtime s[80:81]\n'
    s += f'''  s_load_dwordx2 s[12:13], s[0:1], 0
  s_load_dwordx2 s[24:25], s[0:1], 72
  s_load_dwordx2 s[4:5], s[0:1], 16
  s_load_dwordx2 s[8:9], s[0:1], 48
  v_lshrrev_b32 v2, 6, v0
  s_cmp_ge_u32 s2, 256
  s_cbranch_scc1 L_end
  v_readfirstlane_b32 s30, v2
  s_and_b32 s56, s2, 7
  s_lshr_b32 s57, s2, 3
  s_cmp_ge_u32 s57, 21
  s_cbranch_scc1 L_att
  s_load_dwordx2 s[16:17], s[0:1], 32
  s_load_dwordx2 s[20:21], s[0:1], 40
  s_load_dwordx2 s[68:69], s[0:1], 8
@FFNPF@  ; ffn: rb = 3*(j>>1) + s/7 ; cb = 7*(j&1) + s%7
{MAP}  s_mul_i32 s33, s58, 176
  s_lshl_b32 s60, s33, 4
  s_mul_i32 s101, s58, 14
  s_add_u32 s101, s101, s59
  s_lshl_b32 s101, s101, 7
  s_add_u32 s101, s101, {FLG}
  s_mul_i32 s33, s58, 171
  s_min_u32 s33, s33, 1873
  s_and_b32 s47, s59, {1 if cfg.get('mix', 0) else 0}
  s_lshl_b32 s43, s59, 1
  s_sub_u32 s43, s43, s47
  s_mul_i32 s46, s43, {8*CH}
  s_lshl_b32 s43, s43, 7
  s_add_u32 s46, s46, {64*CH}
  s_add_u32 s46, s46, s60
'''
    e = stamp(cfg, 0x4000000, False) + '  s_branch L_s2\n'
    def two(gen, nm):
        r0, b0 = fin(gen(cfg, 0), nm + '0', cfg); r1, b1 = fin(gen(cfg, 1), nm + '1', cfg)
        assert b0 == b1, (b0, b1)
        h0, r0 = r0.split('  ;SPLIT\n'); h1, r1 = r1.split('  ;SPLIT\n')
        assert h0 == h1
        return h0 + f'  s_cmp_ge_u32 s30, 4\n  s_cbranch_scc1 L_{nm}1\n  s_branch L_{nm}0\n', f'L_{nm}0:\n' + r0 + e + f'L_{nm}1:\n' + r1 + e
    hf, bf = two(gen_ffn, 'ffn')
    s = s.replace('@FFNPF@', hf[:hf.index('  s_load_dwordx2 s[60:61]')]); s += hf[hf.index('  s_load_dwordx2 s[60:61]'):]
    s += f'''L_att:
  s_load_dwordx2 s[16:17], s[0:1], 8
@ATTPF@  ; att: rb = 11*(j>>2) + (s-21) ; hg = j&3
  s_lshr_b32 s58, s56, 2
  s_mul_i32 s58, s58, 11
  s_add_u32 s58, s58, s57
  s_sub_u32 s58, s58, 21
  s_and_b32 s59, s56, 3
  s_mul_i32 s60, s58, 94
  s_lshl_b32 s101, s58, 2
  s_add_u32 s101, s101, s59
  s_lshl_b32 s101, s101, 7
  s_add_u32 s101, s101, {FLG + 168*128}
  s_min_u32 s60, s60, 1953
  s_sub_u32 s33, s60, 16
  s_mul_i32 s43, s59, 224
  s_mul_i32 s46, s59, {16*CH}
  s_mul_i32 s60, s58, 1536
  s_add_u32 s46, s46, s60
  s_cmp_eq_u32 s58, 0
  s_cselect_b64 s[54:55], -1, 0
  s_lshl_b32 s47, s2, 3
  s_add_u32 s47, s47, s30
  s_cmp_lg_u32 s47, 2040
  s_cbranch_scc1 L_nononce
  s_load_dwordx2 s[36:37], s[0:1], 64
  s_memrealtime s[34:35]
  s_mov_b32 s38, 256
  s_mov_b32 s39, 0x20000
  v_mov_b32 v6, 0
  s_waitcnt lgkmcnt(0)
  s_or_b32 s34, s34, 1
  s_mul_i32 s35, s35, 0x9e3779b1
  s_xor_b32 s35, s35, s34
  v_mov_b32 v4, s34
  v_mov_b32 v5, s35
  s_mov_b64 exec, 1
  buffer_store_dwordx2 v[4:5], v6, s[36:39], 0 offen sc1
  s_mov_b64 exec, -1
L_nononce:
'''
    ha, ba = two(gen_att, 'att')
    s = s.replace('@ATTPF@', ha[:ha.index('  s_load_dwordx2 s[60:61]')]); s += ha[ha.index('  s_load_dwordx2 s[60:61]'):] + bf + ba
    s += '''L_s2:
  s_load_dwordx2 s[16:17], s[0:1], 56
  s_cmp_eq_u32 s70, 0
  s_cbranch_scc1 L_pub
  s_cmp_ge_u32 s30, 6
  s_cbranch_scc1 L_s2s
'''
    r0, b0 = fin(gen_s2(cfg, 0), 's2d', cfg); r1, b1 = fin(gen_s2(cfg, 1), 's2s', cfg)
    assert b0 == b1
    e2 = stamp(cfg, 0x4040000, True) + '  s_endpgm\n'
    s += r0 + e2 + 'L_s2s:\n' + r1 + e2
    s += 'L_pub:\n  ' + flag_off() + '\n  s_waitcnt vmcnt(0)\n  s_barrier\n  s_cmp_lg_u32 s30, 6\n  s_cbranch_scc1 L_end\n  ' + nonce_check('b') + '\n  ' + PUB + '\n  s_endpgm\n' + ''.join(SLOW) + 'L_end:\n  s_endpgm\n'
    s += f'''.section .rodata,"a"
.p2align 6
.amdhsa_kernel {KN}
  .amdhsa_next_free_vgpr 256
  .amdhsa_next_free_sgpr 102
  .amdhsa_accum_offset 176
  .amdhsa_group_segment_fixed_size 0
  .amdhsa_kernarg_size 80
  .amdhsa_user_sgpr_count 2
  .amdhsa_user_sgpr_kernarg_segment_ptr 1
  .amdhsa_system_sgpr_workgroup_id_x 1
.end_amdhsa_kernel
'''
    return s

if __name__ == '__main__':
    cfg = dict(CFG)
    out = 'cdna_kernels/' + NAME + '.s'
    for a in sys.argv[1:]:
        if a.startswith('out='): out = a[4:]; continue
        k, v = a.split('=', 1)
        cfg[k] = eval(v)
    open(out, 'w').write(build(cfg))
```
